```python
import torch

def _softmax(x, axis=-1):
    return torch.softmax(x, dim=axis)
def _gelu(x):
    return torch.nn.functional.gelu(x, approximate="tanh")
def _silu(x):
    return torch.nn.functional.silu(x)
def _sigmoid(x):
    return torch.sigmoid(x)
def _layernorm(x, axis=-1, eps=1e-5):
    m = x.mean(dim=axis, keepdim=True)
    v = x.var(dim=axis, keepdim=True, unbiased=False)
    return (x - m) / torch.sqrt(v + eps)
def _scatter_add(tgt, idx, src, axis=0):
    return tgt.clone().index_add_(axis, idx, src)
def _segment_sum(src, seg, n):
    out = torch.zeros((n,) + src.shape[1:], dtype=src.dtype)
    return out.index_add_(0, seg, src)
def _pad(x, pw):
    flat = tuple(v for pair in reversed(pw) for v in pair)
    return torch.nn.functional.pad(x, flat)

kernel_name = 'standalone__mha_block_cached__near_ridge'

def setup_inputs():

    _w = (lambda a: (lambda t: t.to(torch.bfloat16) if t.is_floating_point() else t)(torch.as_tensor(a)))
    B, Sq, D = 16, 160, 640
    H, Sk, Dh = 32, 512, 128
    return {
        "x": _w((lambda *s: torch.randn(*s, dtype=torch.bfloat16) * 0.8)(B, Sq, D)),
        "k_cache": _w((lambda *s: torch.randn(*s, dtype=torch.bfloat16) * 0.8)(B, H, Sk, Dh)),
        "v_cache": _w((lambda *s: torch.randn(*s, dtype=torch.bfloat16) * 0.05)(B, H, Sk, Dh)),
        "wq": _w((lambda *s: torch.randn(*s, dtype=torch.bfloat16) * 0.8)(D, H * Dh) * (D ** -0.5)),
        "wo": _w((lambda *s: torch.randn(*s, dtype=torch.bfloat16) * 0.05)(H * Dh, D) * ((H * Dh) ** -0.5)),
    }

def reference(x, k_cache, v_cache, wq, wo):
    B, Sq, D = x.shape
    H, Dh = 32, 128
    q = (lambda x, *d: x.permute(*d))((x @ wq).reshape(B, Sq, H, Dh), 0, 2, 1, 3)
    scores = torch.einsum("bhqd,bhkd->bhqk", q, k_cache) * (Dh ** -0.5)
    p = _softmax(scores, axis=-1)
    o = torch.einsum("bhqk,bhkd->bhqd", p, v_cache)
    return (lambda x, *d: x.permute(*d))(o, 0, 2, 1, 3).reshape(B, Sq, H * Dh) @ wo
```

```python
import re
REG = re.compile(r"\b([vas])\[(\d+):(\d+)\]|\b([vas])(\d+)\b|\b(vcc|exec|m0)\b")
def regs(tok):
    out = []
    for m in REG.finditer(tok):
        if m.group(1): out += [(m.group(1), k) for k in range(int(m.group(2)), int(m.group(3))+1)]
        elif m.group(4): out.append((m.group(4), int(m.group(5))))
        else: out.append((m.group(6), 0))
    return out
TRANS = ("v_exp_f32", "v_rcp_f32", "v_log_f32", "v_rsq_f32", "v_sqrt_f32")
def parse(ln):
    s = ln.strip()
    op, _, rest = s.partition(" ")
    ops = [x.strip() for x in rest.split(",")] if rest else []
    return op, ops
def fix(lines, verbose=True):
    out = []; pos = 0
    mD = {}; mDrange = {}; vW = {}; tW = {}; mC = {}; sW = {}; m0W = -99; stD = {}
    nfix = 0
    for ln in lines:
        s = ln.strip()
        if not s or s.endswith(":") or s.startswith(";") or s.startswith("."):
            out.append(ln); continue
        op, ops = parse(s)
        need = 0
        def req(last, n):
            nonlocal need
            if last is not None: need = max(need, n - (pos - last - 1))
        isM = op.startswith("v_mfma"); isV = op.startswith("v_") and not isM
        isMem = op.startswith(("buffer_", "ds_", "global_"))
        if isM:
            D, A, B, C = [regs(x) for x in ops[:4]]
            for r in A + B: req(mD.get(r), 8); req(vW.get(r), 2)
            for r in C:
                req(vW.get(r), 2)
                if r in mD and mDrange[r] != tuple(C): req(mD[r], 6)
            for r in D:
                if r in mD and mDrange[r] != tuple(D): req(mD[r], 6)
        elif isV:
            if op.startswith("v_cmp"): dst = regs(ops[0]); src = [r for x in ops[1:] for r in regs(x)]
            elif op.startswith("v_permlane"): dst = regs(ops[0]) + regs(ops[1]); src = dst
            else: dst = regs(ops[0]); src = [r for x in ops[1:] for r in regs(x)]
            if op in ("v_writelane_b32",): src = src + dst
            for r in src + dst: req(mD.get(r), 8)
            for r in src:
                if not op.startswith(TRANS): req(tW.get(r), 1)
                if r[0] in ("s", "vcc"): req(sW.get(r), 4 if op in ("v_readlane_b32","v_writelane_b32") else 2)
                if op.startswith("v_permlane") or "dpp" in op: req(vW.get(r), 2)
                if op.startswith(("v_readfirstlane", "v_readlane")): req(vW.get(r), 1)
            for r in dst: req(mC.get(r), 3); req(stD.get(r), 2)
        elif isMem:
            allr = [r for x in ops for r in regs(x)]
            for r in allr:
                req(mD.get(r), 8)
                if r[0] == "s": req(sW.get(r), 5)
            if s.endswith(" lds"): req(m0W, 1)
        if need > 0:
            out.append("    s_nop %d" % (need-1)); pos += need; nfix += 1
            if verbose: print("hazard fix: +%d before: %s" % (need, s))
        out.append(ln)
        if isM:
            for r in D: mD[r] = pos; mDrange[r] = tuple(D)
            for r in C: mC[r] = pos
        elif isV:
            for r in dst:
                if r[0] in ("s", "vcc"): sW[r] = pos
                else:
                    vW[r] = pos; mD.pop(r, None)
                    if op.startswith(TRANS): tW[r] = pos
                    else: tW.pop(r, None)
        elif isMem and op.startswith("buffer_store_dwordx4"):
            for r in regs(ops[0]): stD[r] = pos
        elif op.startswith("s_") and ops and ops[0] == "m0": m0W = pos
        elif op.startswith("s_") and ops:
            for r in regs(ops[0]): sW.pop(r, None)
        pos += (int(ops[0]) + 1) if op == "s_nop" else 1
    return out, nfix
```

```python
import sys, math, struct

class Em:
    def __init__(self): self.L = []; self.ns = 0; self.pv = 95
    def __call__(self, s):
        for ln in s.strip("\n").split("\n"):
            ln = ln.strip()
            if ln: self.L.append("    " + ln if not ln.endswith(":") else ln)
    def all(self, lst):
        for x in lst: self(x)
    def text(self): return "\n".join(self.L) + "\n"

def vr(b, n=4): return "v[%d:%d]" % (b, b + n - 1)
def ar(b, n=4): return "a[%d:%d]" % (b, b + n - 1)
def mfma(d, a, b, c): return "v_mfma_f32_16x16x32_bf16 %s, %s, %s, %s" % (d, a, b, c)
def f2u(f): return struct.unpack("<I", struct.pack("<f", f))[0]
OPT = dict(nt_kv=1, map=1, wo_il=1, wo_mid=3, wo_poll=0, ldper=7, o0=2, ek=3, wend=28, k_rot=2, pace=5)

import os
PAD = int(os.environ.get("PAD", "1"))
X_BYTES = 16*160*640*2
KV_HEAD = 512*128*2
WQ_BYTES = 640*4096*2
WO_BYTES = 4096*640*2
OUT_BYTES = X_BYTES
STR = 163840 + 8192
WS_WO = 1024*20480
WS_P = WS_WO + 32*STR
PSZ = 13312
WS_FLAG = WS_P + 1024*PSZ
WS_FLAG2 = WS_FLAG + 8192
WS_WFLAG = WS_FLAG + 16384
WS_EPOCH = WS_FLAG + 20480
WS_USED = WS_FLAG + 24576
SCALE = math.log2(math.e) / math.sqrt(128.0)
PROF_OFF = 64 << 20

RING = [0x00000, 0x02000, 0x10000, 0x12000]
SLOT = 0x4000
def slotK(t): return t % 4
def slotV(t): return (t + 2) % 4
def slotT(tn, t): return slotV(t) if tn >= 2 else slotK(t)
WQB0 = 0x8000; WQSTEP = 0x4000; NWQ = 4
XBUF = [0x1D000, 0x22000]; XSZ = 20480; WORAW = 0x18000

V_O = 96
def vO(i, dt): return V_O + (i*8 + dt)*4
V_S = [64, 72]; V_P = [80, 84]; V_NEGM = 40
L_REG = [60, 61, 62, 63, 88]; L_SAVE = 89
V_KA = 4; V_VA = 8; V_DKV = 16; T = 20
V_WQA = 40; V_XA = 48; V_DS = 50
V_DX = 54; V_CK = 16; V_CV = 18; V_WOD = 64; V_WOR = 39
V_LM = {1: 20, 3: 24}; A_ONES = 228; V_FL = 28; V_OWN = 32
V_L16 = 90; V_L16B = 91; V_ZERO = 92; V_ONE = 93; V_CNT = 94
A_Q = 0
A_K = [80, 112]; A_V = [144, 176]
A_WQF = [80, 112]; A_XF = [144, 176]

def ATOM(): return "s_nop 0" if OPT.get("x_noatom") else f"buffer_atomic_add v{V_ONE}, v{V_ZERO}, s[92:95], 0 offen sc1"
def stamp(e):
    if OPT.get("prof"):
        k = e.ns; e.ns += 1; assert k < 15
        if k == 0: e(f"v_mov_b32 v{e.pv}, 0")
        e(f"s_memrealtime s[96:97]\ns_memtime s[98:99]\ns_waitcnt lgkmcnt(0)")
        e(f"v_writelane_b32 v{e.pv}, s96, {k}\nv_writelane_b32 v{e.pv}, s98, {16+k}")
def stamp_out(e):
    if not OPT.get("prof"): return
    if OPT.get("dbgout"):
        e(f"s_cmp_lg_u32 s2, {OPT['dbgout']}\ns_cbranch_scc1 K_END\ns_cmp_lg_u32 s40, 0\ns_cbranch_scc1 K_END")
        e(f"s_mov_b32 s76, s16\ns_and_b32 s77, s17, 0xffff\ns_mov_b32 s78, 64\ns_mov_b32 s79, 0x20000")
        e(f"v_readfirstlane_b32 s75, v{e.pv}\nv_lshlrev_b32 v11, 2, v0\ns_nop 1\nv_subrev_u32 v10, s75, v{e.pv}")
        e(f"buffer_store_dword v10, v11, s[76:79], 0 offen")
        return
    e(f"s_mov_b32 s76, s18\ns_and_b32 s77, s19, 0xffff\ns_mov_b32 s78, {PROF_OFF + (1<<20)}\ns_mov_b32 s79, 0x20000")
    e(f"s_lshl_b32 s75, s2, 10\ns_add_u32 s75, s75, {PROF_OFF}")
    e("v_lshlrev_b32 v11, 2, v0")
    e(f"buffer_store_dword v{e.pv}, v11, s[76:79], s75 offen")

def srd(e, d, p, n):
    e(f"s_mov_b32 s{d}, s{p}\ns_and_b32 s{d+1}, s{p+1}, 0xffff\ns_mov_b32 s{d+2}, {n}\ns_mov_b32 s{d+3}, 0x20000")
def is_m0(x): return x.split(",")[0].endswith("m0")
def plain(e, lst):
    for x in lst:
        e(x)
        if is_m0(x): e("s_nop 0")

def fill_gaps(gaps, start, d, reads, dma_first=True):
    gi = start; ri = 0; di = 0
    d = list(d)
    while ri < len(reads) or di < len(d):
        assert gi < len(gaps), (gi, ri, di, len(d))
        g_ = gaps[gi]; m0w = False
        if di < len(d) and not d[di].startswith("buffer"):
            m0w = is_m0(d[di]); g_.append(d[di]); di += 1
            if ri >= len(reads) and di < len(d) and not d[di].startswith("buffer") and not m0w:
                m0w = is_m0(d[di]); g_.append(d[di]); di += 1
        if di < len(d) and d[di].startswith("buffer") and not m0w and (dma_first or gi % 2 == 1 or ri >= len(reads)):
            g_.append(d[di]); di += 1
        else:
            took = reads[ri:ri+2]; g_ += took; ri += len(took)
        gi += 1
    return gi

def gen(e):
    nt = " nt" if OPT["nt_kv"] else ""
    TK = OPT.get("touch_kv", 0)
    xw_nt = " nt" if OPT.get("xw_nt") else ""
    WE = OPT.get("wo_start", 1)
    e("s_cmp_ge_u32 s2, 256\ns_cbranch_scc1 K_END")
    stamp(e)
    if OPT.get("x_blk") == 1:
        for k in range(2048): e("v_mov_b32 v100, 0x12345678")
    if OPT.get("x_blk") == 2:
        e("s_mov_b32 s40, 0\nXBLK:")
        for k in range(128): e("v_mov_b32 v100, 0x12345678")
        e("s_add_u32 s40, s40, 1\ns_cmp_lt_u32 s40, 16\ns_cbranch_scc1 XBLK")
    e("s_load_dwordx16 s[4:19], s[0:1], 0")
    if OPT.get("ipf", 1):
        e("s_getpc_b64 s[24:25]\nIPF_BASE:")
        e("s_lshr_b32 s26, s2, 3\ns_lshl_b32 s26, s26, 12\nv_lshl_add_u32 v96, v0, 4, s26")
        e("v_min_u32 v96, K_END-IPF_BASE-16, v96")
        e("v_mov_b32 v97, s25\nv_add_co_u32 v96, vcc, s24, v96\nv_addc_co_u32 v97, vcc, 0, v97, vcc")
        e("s_cmp_ge_u32 s26, K_END-IPF_BASE\ns_cbranch_scc1 IPF_SKIP")
        e("global_load_dwordx4 v[100:103], v[96:97], off")
        e("IPF_SKIP:")
    e("v_lshrrev_b32 v1, 6, v0\nv_and_b32 v2, 63, v0")
    e("v_readfirstlane_b32 s40, v1")
    e("v_and_b32 v3, 15, v2\nv_lshrrev_b32 v1, 4, v2")
    if OPT.get("badmap"): e("s_lshr_b32 s43, s2, 5\ns_and_b32 s44, s2, 31\ns_lshr_b32 s45, s44, 2\ns_xor_b32 s44, s44, s45")
    else: e(f"s_add_u32 s43, s2, {OPT.get('xoff', 0)}\ns_and_b32 s43, s43, 7\ns_lshr_b32 s44, s2, 3")
    mp = OPT.get("map", 0)
    if mp == 0:
        e("s_and_b32 s41, s43, 1\ns_lshl_b32 s41, s41, 3\ns_and_b32 s45, s44, 7\ns_add_u32 s41, s41, s45")
        e("s_lshr_b32 s42, s43, 1\ns_lshl_b32 s42, s42, 2\ns_lshr_b32 s45, s44, 3\ns_add_u32 s42, s42, s45")
    elif mp == 1:
        e("s_lshr_b32 s41, s43, 2\ns_lshl_b32 s41, s41, 3\ns_and_b32 s45, s44, 7\ns_add_u32 s41, s41, s45")
        e("s_and_b32 s42, s43, 3\ns_lshl_b32 s42, s42, 2\ns_lshr_b32 s45, s44, 3\ns_add_u32 s42, s42, s45")
    elif mp == 2:
        e("s_and_b32 s41, s43, 1\ns_and_b32 s45, s44, 7\ns_lshl_b32 s45, s45, 1\ns_add_u32 s41, s41, s45")
        e("s_lshr_b32 s42, s43, 1\ns_lshl_b32 s42, s42, 2\ns_lshr_b32 s45, s44, 3\ns_add_u32 s42, s42, s45")
    e("s_lshr_b32 s46, s40, 1\ns_and_b32 s47, s40, 1")
    kr = OPT.get("k_rot", 1)
    if kr == 1:
        e("s_and_b32 s56, s44, 7\ns_mul_i32 s56, s56, 5\ns_lshr_b32 s56, s56, 2\ns_lshr_b32 s49, s44, 3\ns_mul_i32 s49, s49, 5\ns_lshr_b32 s49, s49, 1\ns_add_u32 s56, s56, s49")
        e("s_cmp_ge_u32 s56, 10\ns_cselect_b32 s49, 10, 0\ns_sub_u32 s56, s56, s49")
    elif kr == 2:
        e("s_lshr_b32 s49, s44, 3\ns_add_u32 s56, s44, s49\ns_and_b32 s56, s56, 3\ns_mul_i32 s56, s56, 5\ns_lshr_b32 s56, s56, 1")
    elif kr == 3:
        e("s_lshr_b32 s49, s44, 3\ns_add_u32 s56, s44, s49\ns_and_b32 s56, s56, 1\ns_mul_i32 s56, s56, 5")
    else: e("s_mov_b32 s56, 0")
    e(f"v_lshrrev_b32 v{T}, 1, v3")
    e(f"v_and_b32 v{T+1}, 1, v2\nv_lshlrev_b32 v{T+1}, 4, v{T+1}")
    e(f"v_xor_b32 v{T+2}, v{T}, v1\nv_lshl_add_u32 v{T+2}, v{T+2}, 5, v{T+1}")
    e(f"v_lshl_add_u32 v{V_DS}, v1, 13, v{T+2}")
    e("s_lshl_b32 s48, s47, 17\ns_lshl_b32 s49, s46, 8\ns_add_u32 s48, s48, s49")
    e(f"v_add_u32 v{V_DS}, s48, v{V_DS}")
    e(f"v_add_u32 v{V_DS+1}, {4*8192-1024}, v{V_DS}")
    e(f"v_xor_b32 v{V_DS+2}, 0x80, v{V_DS}")
    e(f"v_add_u32 v{V_DS+3}, {12*8192-3072}, v{V_DS+2}")
    e(f"v_add_u32 v{V_DS+2}, {8*8192-2048}, v{V_DS+2}")
    e("s_lshl_b32 s50, s42, 9\ns_lshl_b32 s48, s56, 19\ns_add_u32 s50, s50, s48")
    e(f"s_lshl_b32 s52, s40, 12")
    e(f"v_lshrrev_b32 v{T+5}, 3, v2\nv_mul_u32_u24 v{T+5}, 1280, v{T+5}")
    e(f"v_and_b32 v{T+6}, 7, v2\nv_xor_b32 v{T+6}, v{T+6}, v1\ns_lshl_b32 s48, s47, 2\nv_xor_b32 v{T+6}, s48, v{T+6}")
    e(f"s_mul_i32 s48, s40, {40*1280}\nv_add_u32 v{T+5}, s48, v{T+5}")
    e(f"v_lshl_add_u32 v{V_DX}, v{T+6}, 4, v{T+5}")
    e(f"v_xor_b32 v{T+6}, 4, v{T+6}\nv_lshl_add_u32 v{V_DX+1}, v{T+6}, 4, v{T+5}")
    e(f"v_add_u32 v{V_DX+2}, {16*1280-2048}, v{V_DX}")
    e(f"v_add_u32 v{V_DX+3}, {24*1280}, v{V_DX+1}")
    e(f"v_add_u32 v{V_DX+4}, {32*1280-1024}, v{V_DX}")
    e(f"v_add_u32 v{V_DX+1}, {8*1280-1024}, v{V_DX+1}")
    e(f"s_mul_i32 s51, s41, {160*1280}\ns_add_u32 s55, s51, 1280\ns_lshl_b32 s48, s56, 7\ns_add_u32 s51, s51, s48")
    e(f"s_mul_i32 s57, s40, 5120\ns_add_u32 s53, s57, {XBUF[0]}\ns_add_u32 s90, s57, {WORAW}\ns_lshl_b32 s58, s53, 1\ns_add_u32 s58, s58, {XSZ}")
    e("s_waitcnt lgkmcnt(0)")
    srd(e, 24, 10, WQ_BYTES); srd(e, 20, 4, X_BYTES)
    e(f"s_add_u32 s28, s18, {WS_EPOCH}\ns_addc_u32 s29, s19, 0\ns_load_dword s30, s[28:29], 0")
    def dma_wq(u):
        out = [f"s_add_u32 m0, s52, {WQB0 + (u % NWQ)*WQSTEP}"]
        out += [f"buffer_load_dwordx4 v{V_DS+j}, s[24:27], s50 offen offset:{j*1024}{xw_nt} lds" for j in range(4)]
        out += [f"s_add_u32 s50, s50, {32*8192}"]
        if u % 2 == 1: out += [f"s_cmp_ge_u32 s50, {WQ_BYTES}", f"s_cselect_b32 s54, {WQ_BYTES}, 0", "s_sub_u32 s50, s50, s54"]
        return out
    def dma_x(v, part):
        if part == 0:
            return [f"s_add_u32 m0, s57, {XBUF[v&1]}"] + [f"buffer_load_dwordx4 v{V_DX+j}, s[20:23], s51 offen offset:{j*1024}{xw_nt} lds" for j in range(3)]
        return [f"s_add_u32 m0, s57, {XBUF[v&1]+3072}"] + [f"buffer_load_dwordx4 v{V_DX+3+j}, s[20:23], s51 offen offset:{j*1024}{xw_nt} lds" for j in range(2)] + \
               ["s_add_u32 s51, s51, 128", "s_cmp_ge_u32 s51, s55", "s_cselect_b32 s54, 1280, 0", "s_sub_u32 s51, s51, s54"]
    plain(e, dma_wq(0) + dma_x(0, 0) + dma_x(0, 1))
    srd(e, 36, 18, WS_USED); srd(e, 32, 12, WO_BYTES)
    e("s_lshl_b32 s48, s41, 4\ns_add_u32 s48, s48, s42\ns_lshl_b32 s48, s48, 18")
    e(f"s_add_u32 s80, s6, s48\ns_addc_u32 s81, s7, 0\ns_and_b32 s81, s81, 0xffff\ns_mov_b32 s82, {2*KV_HEAD}\ns_mov_b32 s83, 0x20000")
    e(f"s_add_u32 s84, s8, s48\ns_addc_u32 s85, s9, 0\ns_and_b32 s85, s85, 0xffff\ns_mov_b32 s86, {2*KV_HEAD}\ns_mov_b32 s87, 0x20000")
    e(f"v_xor_b32 v{T+13}, v3, v1\nv_lshlrev_b32 v{T+13}, 4, v{T+13}")
    e(f"v_lshl_add_u32 v{V_CK}, v1, 8, v{T+13}\ns_lshl_b32 s48, s47, 7\nv_xor_b32 v{V_CK}, s48, v{V_CK}\nv_xor_b32 v{V_CK+1}, 64, v{V_CK}")
    e(f"v_lshl_add_u32 v{V_CV}, v1, 8, v{T+2}\nv_xor_b32 v{V_CV+1}, 0x80, v{V_CV}")
    e("s_lshl_b32 s74, s40, 11")
    if OPT.get("kv_rot", 1):
        e("s_lshl_b32 s100, s44, 1\ns_lshr_b32 s48, s44, 3\ns_add_u32 s100, s100, s48\ns_and_b32 s100, s100, 15\ns_lshl_b32 s100, s100, 13")
        e(f"s_add_u32 s101, s100, {OPT.get('kv_rotd', 1)*8192}\ns_and_b32 s101, s101, 0x1ffff")
    else: e("s_mov_b32 s100, 0\ns_mov_b32 s101, 0")
    e("s_add_u32 s100, s100, s74\ns_add_u32 s101, s101, s74\ns_mov_b32 s79, 0x1ffff")
    e(f"v_lshrrev_b32 v{T+13}, 2, v3")
    e(f"v_and_b32 v{T+14}, 3, v3\nv_lshlrev_b32 v{T+14}, 3, v{T+14}")
    e(f"v_and_b32 v{T+15}, 1, v1\nv_lshl_or_b32 v{T+15}, v{T+15}, 2, v{T+13}")
    e(f"v_lshl_add_u32 v{T+15}, v{T+15}, 5, v{T+14}")
    e(f"v_lshl_add_u32 v{T+16}, v1, 3, v{T+13}\nv_lshl_add_u32 v{T+16}, v{T+16}, 8, v{T+15}")
    e(f"s_lshl_b32 s48, s46, 13\ns_add_u32 s48, s48, {WQB0}")
    e(f"v_add_u32 v{V_WQA}, s48, v{T+16}")
    for dt in range(1, 8): e(f"v_xor_b32 v{V_WQA+dt}, {dt<<5}, v{V_WQA}")
    e(f"v_lshl_add_u32 v{T+16}, v1, 2, v{T+13}\nv_lshl_add_u32 v{T+17}, v{T+16}, 8, v{T+15}")
    e(f"s_lshl_b32 s48, s46, 13\ns_add_u32 s49, s48, {RING[2]}")
    e(f"v_add_u32 v{V_VA}, s49, v{T+17}")
    for dt in range(1, 8): e(f"v_xor_b32 v{V_VA+dt}, {dt<<5}, v{V_VA}")
    e(f"v_mul_u32_u24 v{V_WOR}, 640, v{T+16}\nv_add_u32 v{V_WOR}, v{V_WOR}, v{T+14}")
    e(f"s_mul_i32 s49, s40, 160\ns_add_u32 s49, s49, {WORAW}\nv_add_u32 v{V_WOR}, s49, v{V_WOR}")
    e(f"v_and_b32 v{T+13}, 1, v1\nv_lshlrev_b32 v{T+13}, 1, v{T+13}\nv_lshrrev_b32 v{T+14}, 1, v1\nv_or_b32 v{T+13}, v{T+13}, v{T+14}")
    e(f"v_xor_b32 v{T+13}, v{T+13}, v3\nv_lshlrev_b32 v{T+13}, 4, v{T+13}\nv_lshl_add_u32 v{T+13}, v3, 8, v{T+13}")
    e(f"v_add_u32 v{V_KA}, s48, v{T+13}")
    for s in range(1, 4): e(f"v_xor_b32 v{V_KA+s}, {s<<6}, v{V_KA}")
    e(f"v_xor_b32 v{T+13}, v{T}, v1\nv_lshlrev_b32 v{T+13}, 4, v{T+13}\nv_lshl_add_u32 v{T+13}, v3, 7, v{T+13}")
    e(f"s_mul_i32 s48, s47, {80*128}\ns_add_u32 s48, s48, {XBUF[0]}")
    e(f"v_add_u32 v{V_XA}, s48, v{T+13}\nv_xor_b32 v{V_XA+1}, 64, v{V_XA}")
    e(f"v_lshlrev_b32 v{V_L16}, 4, v2\nv_add_u32 v{V_L16B}, 4096, v{V_L16}\nv_mov_b32 v{V_ZERO}, 0\n")
    e("s_lshr_b32 s88, s42, 2\ns_and_b32 s89, s42, 3")
    e(f"s_lshl_b32 s91, s41, 2\ns_add_u32 s91, s91, s88\ns_lshl_b32 s91, s91, 7\ns_add_u32 s91, s91, {WS_FLAG}\ns_lshl_b32 s48, s89, 2\ns_add_u32 s78, s91, s48")
    e(f"s_lshr_b32 s77, s2, 3\ns_lshl_b32 s77, s77, 7\ns_and_b32 s48, s2, 7\ns_lshl_b32 s48, s48, 2\ns_add_u32 s77, s77, s48\ns_add_u32 s77, s77, {WS_WFLAG}")
    e("s_cmp_eq_u32 s40, 0\ns_cselect_b32 s77, s77, 0x7000000")
    e(f"v_lshrrev_b32 v94, 1, v2\nv_lshlrev_b32 v94, 7, v94\nv_add_u32 v94, v94, v{T+1}")
    for j in range(5):
        e(f"v_add_u32 v{T+13}, {64*j}, v2")
        e(f"v_mul_u32_u24 v{T+14}, 1639, v{T+13}\nv_lshrrev_b32 v{T+14}, 16, v{T+14}")
        e(f"v_mul_u32_u24 v{T+15}, 640, v{T+14}")
        e(f"v_lshl_add_u32 v{V_WOD+j}, v{T+13}, 4, v{T+15}")
        if 0 < j < 4: e(f"v_subrev_u32 v{V_WOD+j}, {j*1024}, v{V_WOD+j}")
    e(f"s_lshr_b32 s61, s2, 1\ns_mul_i32 s59, s61, {32*1280}\ns_and_b32 s48, s2, 1\ns_lshl_b32 s48, s48, 2\ns_add_u32 s48, s48, s40")
    e(f"s_and_b32 s49, s2, 1\ns_mul_i32 s49, s49, 640\ns_add_u32 s59, s59, s49\ns_mul_i32 s49, s40, {8*1280}\ns_add_u32 s59, s59, s49")
    e("s_lshr_b32 s64, s61, 5\ns_lshl_b32 s64, s64, 2\ns_lshr_b32 s67, s48, 1\ns_add_u32 s64, s64, s67\ns_lshl_b32 s64, s64, 1\ns_bfe_u32 s49, s61, 0x10002\ns_add_u32 s64, s64, s49")
    e(f"s_mul_i32 s64, s64, {STR}\ns_xor_b32 s48, s48, s49\ns_and_b32 s48, s48, 1\ns_mul_i32 s48, s48, 5120\ns_add_u32 s64, s64, s48")
    e("s_bfe_u32 s48, s61, 0x20003\ns_cmp_lt_u32 s48, s67\ns_addc_u32 s49, s48, 0\ns_cmp_eq_u32 s48, s67\ns_cselect_b32 s48, 0, s49")
    e(f"s_lshl_b32 s48, s48, 2\ns_and_b32 s61, s61, 3\ns_add_u32 s61, s61, s48\ns_mul_i32 s61, s61, 10240\ns_add_u32 s61, s61, s64\ns_add_u32 s61, s61, {WS_WO}")
    e(f"s_waitcnt lgkmcnt(0)\ns_mul_i32 s30, s30, 0x9E3779B1\ns_add_u32 s30, s30, 0x7F4A7C15\ns_mov_b32 s31, 1\nv_mov_b32 v{V_ONE}, s30")
    def wo_dma():
        return ["s_mov_b32 m0, s90"] + [f"buffer_load_dwordx4 v{V_WOD+j}, s[32:35], s59 offen offset:{j*1024} lds" for j in range(4)] + \
               ["s_add_u32 m0, s90, 4096", f"buffer_load_dwordx4 v{V_WOD+4}, s[32:35], s59 offen lds"]
    plain(e, dma_wq(1) + dma_x(1, 0) + dma_x(1, 1) + dma_wq(2))
    stamp(e)
    def coop(tensor, tile):
        sr = "s[84:87]" if tensor >= 2 else "s[80:83]"; vb = V_CV if tensor >= 2 else V_CK
        return [f"s_add_u32 s75, s{100 + (tensor & 1)}, {tile*8192}", "s_and_b32 s75, s75, s79"] + ([f"s_add_u32 s75, s75, {KV_HEAD}"] if tensor & 1 else []) + [f"s_add_u32 m0, s74, {RING[tensor] + slotT(tensor, tile)*SLOT}"] + \
               [f"buffer_load_dwordx4 v{vb+k}, {sr}, s75 offen offset:{k*1024}{nt} lds" for k in range(2)]
    def rd_wq(u):
        out = []; buf = u & 1; off = (u % NWQ)*WQSTEP
        for dt in range(8):
            out.append(f"ds_read_b64_tr_b16 {ar(A_WQF[buf]+4*dt,2)}, v{V_WQA+dt} offset:{off}")
            out.append(f"ds_read_b64_tr_b16 {ar(A_WQF[buf]+4*dt+2,2)}, v{V_WQA+dt} offset:{off+1024}")
        return out
    def rd_x(v, u): return [f"ds_read_b128 {ar(A_XF[u]+4*i)}, v{V_XA+u} offset:{(v&1)*XSZ + i*2048}" for i in range(5)]
    def qp_mfmas(half, first=False):
        return [mfma(vr(vO(i,dt)), ar(A_WQF[half]+4*dt), ar(A_XF[half]+4*i), "0" if first else vr(vO(i,dt))) for i in range(5) for dt in range(8)]
    def k_reads(buf, slot):
        return [f"ds_read_b128 {ar(A_K[buf]+(U*4+s)*4)}, v{V_KA+s} offset:{slot*SLOT+U*4096}" for U in range(2) for s in range(4)]
    def v_reads(buf, slot):
        out = []
        for dt in range(8):
            out.append(f"ds_read_b64_tr_b16 {ar(A_V[buf]+dt*4,2)}, v{V_VA+dt} offset:{slot*SLOT}")
            out.append(f"ds_read_b64_tr_b16 {ar(A_V[buf]+dt*4+2,2)}, v{V_VA+dt} offset:{slot*SLOT+4096}")
        return out
    W = lambda u: (("w", u), dma_wq(u)); X0 = lambda v: (("x", v), dma_x(v, 0)); X1 = lambda v: (("x", v), dma_x(v, 1))
    KV = lambda t, k: (("kv", k), coop(t, k))
    WST = [f"buffer_store_dwordx4 {ar(208+4*n)}, v{V_L16 if n<4 else V_L16B}, s[36:39], s61 offen offset:{(n%4)*1024} sc1" for n in range(5)]
    WOD = (("wo", 0), wo_dma())
    sched = {u: [] for u in range(20)}
    sched[0] = [W(3)]
    for u in range(16):
        if u % 2 == 0: sched[u] += [X0(u//2+2), X1(u//2+2)]
        sched[u] += [W(u+4)]
    WOA = OPT.get("woa", 3); WOR = WOA + 3
    sched[WOA] += [WOD]
    ek = OPT.get("ek", 1)
    if ek == 1: early_kv = {5: [KV(0,0), KV(1,0)], 9: [KV(2,0), KV(3,0)], 13: [KV(0,1), KV(1,1)]}
    elif ek == 2: early_kv = {5: [KV(0,0)], 7: [KV(1,0)], 9: [KV(2,0)], 11: [KV(3,0)], 13: [KV(0,1)], 15: [KV(1,1)]}
    elif ek == 3: early_kv = {11: [KV(0,0), KV(1,0)], 13: [KV(2,0), KV(3,0)], 15: [KV(0,1), KV(1,1)]}
    for u, l in early_kv.items(): sched[u] += l
    sched[16] = [KV(2,1), KV(3,1), KV(0,2)]; sched[17] = [KV(1,2)]; sched[18] = [KV(2,2), KV(3,2)]; sched[19] = [KV(0,3), KV(1,3)]
    kv_late = [KV(2,3), KV(3,3)]
    log = [("w",0)]*4 + [("x",0)]*5 + [("w",1)]*4 + [("x",1)]*5 + [("w",2)]*4
    def need_wait(tags):
        last = max(i for i, x in enumerate(log) if x in tags); return len(log) - 1 - last
    wait0 = need_wait([("w",0), ("x",0)])
    waits = {}
    for u in range(20):
        tags = ([("w", u+1)] if u < 19 else []) + ([("x", (u+1)//2)] if u % 2 == 1 and u < 19 else [])
        if u == WOR: tags.append(("wo", 0))
        waits[u] = need_wait(tags) if tags else None
        for tag, ins in sched[u]: log.extend([tag] * sum(x.startswith("buffer") for x in ins))
    def substage(u, wait, first=False):
        half = u & 1
        ms = qp_mfmas(half, first)
        G = [dict(s=[], d=[], v=[]) for _ in range(40)]
        BG = 6 if half == 0 else 1
        G[BG-1]["s"].append(f"s_waitcnt vmcnt({min(63,wait)}) lgkmcnt(0)")
        G[BG]["s"].append("s_barrier")
        d = [x for _, ins in sched[u] for x in ins]
        nd = sum(x.startswith("buffer") for x in d)
        lo = BG + 3; hi = 37
        dg = [lo + (k*(hi-lo))//max(nd,1) for k in range(nd)]
        prev = lo - 2; pend = []; k = 0
        def flush(av):
            for n, p in enumerate(pend): G[av[min(len(av)-1, (n*len(av))//len(pend))]]["s"].append(p)
        for x in d:
            if x.startswith("buffer"):
                gp = dg[k]; k += 1
                if pend: flush(list(range(prev+1, gp)) or [gp-1]); pend = []
                G[gp]["d"].append(x); prev = gp
            else: pend.append(x)
        if pend: flush(list(range(prev+1, 40)))
        items = rd_wq(u+1)
        if half == 1: items = rd_x((u+1)//2, 0) + items
        if u == WOR:
            wr = []
            for n in range(5):
                wr += [f"ds_read_b64_tr_b16 {ar(208+4*n,2)}, v{V_WOR} offset:{n*32}", f"ds_read_b64_tr_b16 {ar(208+4*n+2,2)}, v{V_WOR} offset:{n*32+10240}"]
            items = items + wr
        gi = BG + 1
        fixed = {}
        if half == 1:
            xs = rd_x((u+1)//2, 1)
            for i in range(5): fixed[min(39, 8*i + 8)] = xs[i]
        while items or any(k >= gi for k in fixed):
            assert gi < 40, (u, len(items))
            if G[gi]["d"]:
                if gi in fixed: fixed[gi+1] = fixed.pop(gi)
                gi += 1; continue
            room = 2 if len(G[gi]["s"]) <= 1 else max(0, 3 - len(G[gi]["s"]))
            if gi >= 30: room = 2
            if gi in fixed: G[gi]["v"].append(fixed[gi]); room -= 1
            while room > 0 and items:
                if G[gi]["v"] and G[gi]["v"][-1].startswith("v_") and items[0].startswith("ds_"): break
                G[gi]["v"].append(items.pop(0)); room -= 1
            gi += 1
        if OPT.get("prof") == 3:
            G[30]["s"].append("s_memrealtime s[96:97]")
            e(f"s_waitcnt lgkmcnt(0)\ns_add_u32 m0, s76, 32\ns_add_u32 s76, s76, 1\nv_writelane_b32 v95, s96, m0")
        e("s_waitcnt lgkmcnt(1)" if half == 0 else "s_waitcnt lgkmcnt(0)")
        for m, g_ in zip(ms, G):
            if OPT.get("x_qhalf") and (ms.index(m) & 1): m = "s_nop 3"
            e(m); e.all(g_["d"] + g_["s"] + g_["v"] if g_["d"] else g_["s"] + g_["v"])
    e("s_mov_b32 s76, 0")
    e(f"s_waitcnt vmcnt({wait0})\ns_barrier")
    e.all(rd_x(0, 0) + rd_wq(0) + rd_x(0, 1))
    stamp(e)
    for u in range(19): substage(u, waits[u], first=(u == 0))
    stamp(e)
    e("s_waitcnt lgkmcnt(0)")
    ms = qp_mfmas(1)
    gaps = [[] for _ in range(40)]
    n19 = sum(x.startswith("buffer") for _, ins in sched[19] for x in ins)
    w19 = need_wait([("kv", 0)]) - n19
    gaps[0] = [f"s_waitcnt vmcnt({w19})"]; gaps[1] = ["s_barrier"]
    d = [x for _, ins in sched[19] for x in ins] + [f"s_mov_b32 s68, {f2u(SCALE)}", "s_mov_b32 s69, s68"]
    fill_gaps(gaps, 2, d, k_reads(0, slotK(0)) + v_reads(0, slotV(0)), dma_first=False)
    for m, g_ in zip(ms, gaps):
        e(m); e.all(g_)
    stamp(e)
    def conv(i):
        out = []
        for s in range(4):
            b0 = vO(i, 2*s); t = T + 4*s
            out += [f"v_pk_mul_f32 {vr(b0+r,2)}, {vr(b0+r,2)}, s[68:69]" for r in range(0, 8, 2)]
            out += [f"v_cvt_pk_bf16_f32 v{t+r}, v{b0+2*r}, v{b0+2*r+1}" for r in range(4)]
        for s in range(4):
            t = T + 4*s
            out += [f"v_permlane16_swap_b32 v{t}, v{t+2}", f"v_permlane16_swap_b32 v{t+1}, v{t+3}"]
        out += [f"v_accvgpr_write_b32 a{A_Q+i*16+r}, v{T+r}" for r in range(16)]
        out += ["s_nop 1"]
        return out
    def prepass(i):
        return [mfma(vr(V_NEGM+4*i), ar(A_K[0]+s*4), ar(A_Q+(i*4+s)*4), "0" if s == 0 else vr(V_NEGM+4*i)) for s in range(4)]
    for i in range(5):
        e.all(conv(i))
        if i >= 5 - len(kv_late):
            tag, ins = kv_late[i - (5 - len(kv_late))]; plain(e, ins); log.extend([tag]*2)
        if i == 0: e("s_waitcnt lgkmcnt(0)")
        e.all(prepass(i))
    e("ATT_MAX:")
    for i in range(5): e(f"v_mov_b32 v{L_REG[i]}, 0")
    e(f"v_mov_b32 v{T}, 0x3f803f80")
    for r in range(4): e(f"v_accvgpr_write_b32 a{A_ONES+r}, v{T}")
    e(f"s_lshl_b32 s64, s42, 1\ns_add_u32 s64, s64, s46\ns_mul_i32 s64, s64, {STR}\ns_add_u32 s64, s64, {WS_WO}")
    e(f"s_lshl_b32 s48, s47, 12\ns_add_u32 s65, s64, s48")
    e("s_mul_i32 s60, s46, 0x18000\ns_add_u32 s62, s60, s48\ns_xor_b32 s63, s62, 0x8000\ns_lshl_b32 s92, s46, 14\ns_add_u32 s92, s92, 0x20000\ns_add_u32 s92, s92, s48")
    for i in range(5):
        n = V_NEGM + 4*i
        e(f"v_max3_f32 v{n}, v{n}, v{n+1}, v{n+2}\nv_max_f32 v{n}, v{n}, v{n+3}\nv_mov_b32 v{n+1}, v{n}")
    e("s_nop 1")
    for i in range(5): e(f"v_permlane16_swap_b32 v{V_NEGM+4*i}, v{V_NEGM+4*i+1}")
    for i in range(5):
        n = V_NEGM + 4*i
        e(f"v_max_f32 v{n}, v{n}, v{n+1}\nv_mov_b32 v{n+1}, v{n}")
    e("s_nop 1")
    for i in range(5): e(f"v_permlane32_swap_b32 v{V_NEGM+4*i}, v{V_NEGM+4*i+1}")
    for i in range(5):
        n = V_NEGM + 4*i
        e(f"v_max_f32 v{n}, v{n}, v{n+1}")
        e(f"v_sub_f32 v{n}, 0, v{n}\nv_mov_b32 v{n+1}, v{n}\nv_mov_b32 v{n+2}, v{n}\nv_mov_b32 v{n+3}, v{n}")
    e("ATT_MAIN:")
    e("s_nop 1")
    def qk(u):
        t, i = divmod(u, 5); kb = A_K[t & 1]; S = V_S[u & 1]
        return [mfma(vr(S+4*U), ar(kb+(U*4+s)*4), ar(A_Q+(i*4+s)*4), vr(V_NEGM+4*i) if s == 0 else vr(S+4*U)) for U in range(2) for s in range(4)]
    def pv(u):
        t, i = divmod(u, 5); vb = A_V[t & 1]; P = V_P[u & 1]
        out = [mfma(vr(vO(i,dt)), ar(vb+dt*4), vr(P), "0" if t == 0 else vr(vO(i,dt))) for dt in range(8)]
        if i in V_LM: out.append(mfma(vr(V_LM[i]), ar(A_ONES), vr(P), "0" if t == 0 else vr(V_LM[i])))
        return out
    def ex(u, r): S = V_S[u & 1]; return f"v_exp_f32 v{S+r}, v{S+r}"
    def cv(u, r): S = V_S[u & 1]; P = V_P[u & 1]; return f"v_cvt_pk_bf16_f32 v{P+r}, v{S+2*r}, v{S+2*r+1}"
    def ad(u, r):
        if u % 5 in V_LM: return []
        S = V_S[u & 1]; l = L_REG[u % 5]; return [f"v_add_f32 v{l}, v{S+r}, v{l}"]
    e.all(qk(0))
    e("s_nop 3")
    for r in range(4): e(ex(0, r))
    e(cv(0, 0)); e(cv(0, 1)); e(ex(0, 4))
    for r in range(4): e.all(ad(0, r))
    stamp(e)
    tiles = [KV(tn, j) for j in range(4, 16) for tn in range(4)]
    pace = {0: [4]*12 + [0]*4, 1: [3,3,3,3,4,4,4,4,4,4,4,4,4,0,0,0], 2: [4,3,4,3,4,3,4,3,4,4,4,4,4,0,0,0], 3: [3,3,3,3,3,3,4,4,4,4,4,4,4,2,0,0], 4: [4,4,4,4,4,4,4,4,3,3,3,3,4,0,0,0], 5: [4,4,3,4,3,4,3,4,3,4,4,4,4,0,0,0]}[OPT.get("pace", 1)]
    assert sum(pace) == 48
    def wo_chunk(c):
        p = (8*c) % 80; r = p >> 4; off = (p & 15)*1024
        m0 = f"s_add_u32 m0, {['s92','s62','s62','s63','s63'][r]}, {off + (0 if r in (0,1,3) else SLOT)}"
        return (("wl", c), [f"s_add_u32 s75, s65, {c*8192}", m0] +
                [f"buffer_load_dwordx4 v{V_L16}, s[36:39], s75 offen offset:{j*1024} sc1 lds" for j in range(4)])
    work = {t: [tiles.pop(0) for _ in range(pace[t])] for t in range(16)}
    ST = OPT.get("wo_st", 0)
    if OPT.get("x_nowst"): WST = [x.replace("s61", "s99") for x in WST]; e("s_mov_b32 s99, 0x7000000")
    work[ST] += [(("st", 0), WST[:3])]; work[ST+1] += [(("st", 0), WST[3:])]
    FS = ST + 4; CL = 10; CK = 12
    wl = OPT.get("wl", 1)
    wsch = {1: {13: [0, 1, 2], 14: [3, 4], 15: [5, 6]}, 2: {12: [0], 13: [1, 2, 3], 14: [4, 5], 15: [6, 7]}, 3: {13: [0, 1, 2], 14: [3, 4]}}[wl]
    for t, cs in wsch.items(): work[t] += [wo_chunk(c) for c in cs]
    wo_done = [c for cs in wsch.values() for c in cs]
    for t in range(16):
        if t == CK:
            e(f"s_waitcnt vmcnt({min(63, need_wait([('cl', 0)]))})")
            e("s_mov_b32 s48, 0")
            e("WO_CHK:")
            e(f"v_cmp_ne_u32 vcc, s30, v{V_FL}\nv_cmp_ne_u32 s[94:95], s30, v{V_FL+1}\ns_or_b64 s[94:95], s[94:95], vcc")
            e(f"v_cmp_ne_u32 vcc, s30, v{V_FL+2}\ns_nop 1\ns_or_b64 s[94:95], s[94:95], vcc\nv_cmp_ne_u32 vcc, s30, v{V_FL+3}\ns_nop 1\ns_or_b64 s[94:95], s[94:95], vcc")
            e("s_cbranch_scc0 WO_OK")
            e("s_add_u32 s48, s48, 1\ns_cmp_ge_u32 s48, 0x40000\ns_cbranch_scc1 WO_OK")
            e(f"s_sleep 8\nbuffer_load_dwordx4 {vr(V_FL)}, v94, s[36:39], s93 offen sc1\ns_waitcnt vmcnt(0)\ns_branch WO_CHK")
            e("WO_OK:")
        reads = (k_reads((t+1) & 1, slotK(t+1)) + v_reads((t+1) & 1, slotV(t+1))) if t < 15 else []
        MS = []; G = []
        for i in range(5):
            u = 5*t + i
            last = (u == 79)
            ms = (qk(u+1) if not last else []) + pv(u)
            g = [dict(s=[], m=[], v=[], per=i) for _ in range(len(ms))]
            if not last:
                g[1]["v"].append(ex(u, 5)); g[3]["v"].append(ex(u, 6)); g[5]["v"].append(ex(u, 7))
                g[0]["v"] += ad(u, 4); g[2]["v"] += [cv(u, 2)] + ad(u, 5); g[4]["v"] += ad(u, 6); g[6]["v"] += [cv(u, 3)] + ad(u, 7)
                for k, gp in enumerate((7, 9, 11, 13, 15)): g[gp]["v"].append(ex(u+1, k))
                g[8]["v"] += ad(u+1, 0); g[10]["v"] += [cv(u+1, 0)] + ad(u+1, 1); g[12]["v"] += ad(u+1, 2); g[14]["v"] += [cv(u+1, 1)] + ad(u+1, 3)
            else:
                G[-1]["v"] += [ex(u, 5), ex(u, 6), ex(u, 7)] + ad(u, 4) + [cv(u, 2)] + ad(u, 5) + [cv(u, 3)] + ad(u, 6) + ad(u, 7)
            MS += ms; G += g
        def used(g_): return sum(2 if x.startswith("v_exp") else 1 for x in g_["v"]) + sum(2 if x.startswith("buffer") else 1 for x in g_["m"])
        tags = [("kv", t+1)] if t < 15 else []
        if t == FS: tags.append(("st", 0))
        wv = f"vmcnt({min(63, need_wait(tags))}) " if tags else ""
        G[0]["s"].append(f"s_waitcnt {wv}lgkmcnt(0)")
        G[1]["s"].append("s_barrier")
        if OPT.get("prof") == 2:
            G[2]["s"].append("s_memrealtime s[96:97]")
            G[70]["s"] += ["s_waitcnt lgkmcnt(0)"]; G[70]["v"].append(f"v_writelane_b32 v95, s96, {32+t}")
        wk = list(work[t])
        if t == FS: wk.insert(0, (("fs", 0), [f"buffer_store_dword v{V_ONE}, v{V_ZERO}, s[36:39], s77 offen sc1"]))
        if t == CL: wk.insert(0, (("cl", 0), [f"s_mov_b32 s93, {WS_WFLAG}", f"buffer_load_dwordx4 {vr(V_FL)}, v94, s[36:39], s93 offen sc1"]))
        d = [(tag, x) for tag, ins in wk for x in ins]
        nd = sum(x.startswith("buffer") for _, x in d)
        free = [k for k in range(4, len(G)) if used(G[k]) == 0]
        half = [k for k in range(4, len(G)) if used(G[k]) == 1]
        cand = list(free)
        hk = 0
        while len(cand) < nd:
            cand.append(half[(hk*7 + 3) % len(half)] if half[(hk*7 + 3) % len(half)] not in cand else [k for k in half if k not in cand][0]); hk += 1
        cand = sorted(cand)
        if len(cand) > nd: cand = [cand[(k*len(cand))//nd] for k in range(nd)]
        prev = 1; pend = []; k = 0
        for tag, x in d:
            if x.startswith("buffer"):
                gp = cand[k]; k += 1
                av = list(range(prev+1, gp)) or [gp-1]
                av = av[-len(pend):] if pend else av
                for n, p in enumerate(pend):
                    tgt = G[av[min(len(av)-1, (n*len(av))//len(pend))]]
                    (tgt["post"] if False else tgt.setdefault("s2" if tgt["m"] and tgt["m"][0].startswith("buffer") else "s", [])).append(p)
                pend = []
                if OPT.get("thr") and tag[0] == "kv": G[gp]["s"].append(f"s_waitcnt vmcnt({OPT['thr']})")
                G[gp]["m"].append(x); prev = gp; log.append(tag)
            else: pend.append(x)
        assert not pend
        kpos = None; nr = 0
        for rnd in range(2):
            for k in range(2, len(G)):
                if not reads: break
                if any(x.startswith("buffer") for x in G[k]["m"]): continue
                lim = 2 if rnd == 0 else 3
                while reads and used(G[k]) < lim and (rnd == 0 or used(G[k]) == 2 and not G[k]["v"][0].startswith("v_exp") if G[k]["v"] else True):
                    G[k].setdefault("r", []); G[k]["m"].append(reads.pop(0))
                    if rnd == 1: break
        assert not reads
        if t < 15:
            allr = k_reads((t+1) & 1, slotK(t+1)) + v_reads((t+1) & 1, slotV(t+1))
            c = 0; p4 = [k for k in range(len(G)) if G[k]["per"] == 4][0]; before = 0
            for k in range(len(G)):
                for n, x in enumerate(G[k]["m"]):
                    if x.startswith("ds_"):
                        G[k]["m"][n] = allr[c]; c += 1
                        if k < p4 - 1: before += 1
            assert before >= 8
            G[p4-1]["s"].append(f"s_waitcnt lgkmcnt({min(15, before-8)})")
        for m, g_ in zip(MS, G):
            if OPT.get("x_nomfma"): m = "s_nop 1"
            if OPT.get("x_halfm") and " v[8" in m: m = "s_nop 1"
            if OPT.get("x_novalu"): g_["v"] = ["s_nop 1"]
            e(m); e.all(g_["s"] + g_["m"] + g_.get("s2", []) + g_["v"])
    stamp(e)
    TR = 64
    A3 = [i for i in range(5) if i not in V_LM]
    for i in A3: e(f"v_mov_b32 v{TR+i}, v{L_REG[i]}")
    e("s_nop 1")
    for i in A3: e(f"v_permlane16_swap_b32 v{L_REG[i]}, v{TR+i}")
    for i in A3: e(f"v_add_f32 v{L_REG[i]}, v{L_REG[i]}, v{TR+i}\nv_mov_b32 v{TR+i}, v{L_REG[i]}")
    e("s_nop 1")
    for i in A3: e(f"v_permlane32_swap_b32 v{L_REG[i]}, v{TR+i}")
    for i in A3: e(f"v_add_f32 v{L_REG[i]}, v{L_REG[i]}, v{TR+i}")
    for i in V_LM: e(f"v_mov_b32 v{L_REG[i]}, v{V_LM[i]}")
    for i in range(5): e(f"v_rcp_f32 v{TR+2*i}, v{L_REG[i]}")
    e(f"v_add_f32 v76, v{L_REG[0]}, v{L_REG[1]}\nv_add_f32 v77, v{L_REG[2]}, v{L_REG[3]}\nv_add_f32 v76, v76, v{L_REG[4]}\nv_add_f32 v76, v76, v77")
    e(f"v_cmp_nge_f32 vcc, 0x4e800000, v76")
    e("v_and_b32 v77, 1, v2\nv_lshlrev_b32 v77, 12, v77\nv_and_b32 v78, 2, v2\nv_lshl_add_u32 v77, v78, 14, v77")
    e("s_cmp_lg_u64 vcc, 0\ns_cselect_b32 s56, s31, 0\ns_lshl_b32 s57, s40, 2\ns_add_u32 s57, s57, 0xC000")
    e("v_add_u32 v77, s57, v77\nv_mov_b32 v78, s56\nds_write_b32 v77, v78")
    e("s_add_u32 s57, s63, 0x4000\nv_mov_b32 v79, s57")
    e("s_lshl_b32 s48, s41, 4\ns_add_u32 s48, s48, s42\ns_lshl_b32 s48, s48, 2\ns_add_u32 s48, s48, s40\ns_mul_i32 s48, s48, 20480")
    e(f"s_lshl_b32 s49, s47, 12\ns_sub_u32 s56, s92, s49\nv_add_u32 v84, s56, v{V_L16}\nv_add_u32 v85, s60, v{V_L16}\nv_xor_b32 v86, 0x8000, v85")
    def ost(i, s): return f"buffer_store_dwordx4 {vr(vO(i,2*s))}, v{V_L16 if i<4 else V_L16B}, s[36:39], s48 offen offset:{(i%4)*1024} sc1"
    A_WF = [100, 140]
    RA = {0: 84, 1: 85, 2: 85, 3: 86, 4: 86}
    def w_reads(ks, order=range(10)):
        out = []
        for n in order:
            p = (10*ks + n) % 80; r = p >> 4
            out.append(f"ds_read_b128 {ar(A_WF[ks & 1] + 4*n)}, v{RA[r]} offset:{(p & 15)*1024 + (0 if r in (0,1,3) else SLOT)}")
        return out
    def chunk_needed(ks): return (10*ks + 9) // 8
    def norm(s_):
        for i in range(5):
            b0 = vO(i, 2*s_)
            for r in range(0, 8, 2): e(f"v_pk_mul_f32 {vr(b0+r,2)}, {vr(b0+r,2)}, {vr(TR+2*i,2)} op_sel_hi:[1,0]")
            for r in range(4): e(f"v_cvt_pk_bf16_f32 v{b0+r}, v{b0+2*r}, v{b0+2*r+1}")
            e(ost(i, s_)); log.append(("os", s_))
        e("s_add_u32 s48, s48, 5120")
    for s_ in range(3): norm(s_)
    e(f"s_waitcnt vmcnt({min(63, need_wait([('wl', chunk_needed(1))]))}) lgkmcnt(0)\ns_barrier")
    e("ds_read_b128 v[80:83], v79")
    e.all(w_reads(0))
    norm(3)
    e("s_waitcnt lgkmcnt(10)\nv_or3_b32 v80, v80, v81, v82\nv_or_b32 v80, v80, v83\ns_nop 0\nv_readfirstlane_b32 s56, v80")
    if not OPT.get("x_nofb"): e("s_cmp_lg_u32 s56, 0\ns_cbranch_scc1 FALLBACK")
    e("v_mov_b32 v88, v84\nv_mov_b32 v89, v85\nv_mov_b32 v94, v86")
    RA = {0: 88, 1: 89, 2: 89, 3: 94, 4: 94}
    e("s_cmp_eq_u32 s40, 0\ns_cselect_b32 s78, s78, 0x7000000")
    stamp(e)
    KEEP = [8, 12] + list(range(16, 88, 4)) + [vO(i, 1) for i in range(5)]
    assert len(KEEP) == 25
    def acc(i, n): return vr(KEEP[n*5+i]) if n < 5 else ar(((n-5)*5+i)*4)
    def own(s): return [vr(vO(i, 2*s)) for i in range(5)]
    OS = [[vr(vO(i, 2*s+1)) for i in range(5)] for s in (1, 2, 3)] + [[ar(180 + 20*k + 4*i) for i in range(5)] for k in range(3)] + [own(s) for s in range(4)]
    def oslot(ks): return own(ks) if ks < 4 else OS[(ks-4) % 10]
    def o_loads(ks):
        j, s_ = divmod(ks, 4)
        pre = []
        if s_ == 0: pre = [f"s_cmp_lt_u32 s89, {j}", f"s_cselect_b32 s53, {j}, {j-1}", "s_mul_i32 s53, s53, 81920", "s_add_u32 s53, s53, s52"]
        return pre + [f"buffer_load_dwordx4 {oslot(ks)[i]}, v{V_L16 if i<4 else V_L16B}, s[36:39], s53 offen offset:{(i%4)*1024} sc1" for i in range(5)] + ["s_add_u32 s53, s53, 5120"]
    e("s_lshl_b32 s52, s41, 2\ns_add_u32 s52, s52, s88\ns_lshl_b32 s52, s52, 4\ns_add_u32 s52, s52, s40\ns_mul_i32 s52, s52, 20480")
    nextc = max(wo_done) + 1; nexto = 4
    KF = OPT.get("kf", 2); PG = OPT.get("pg", 30)
    pl = "v[4:7]"; carry = 0
    def M(ks, i, n): return mfma(acc(i, n), ar(A_WF[ks & 1] + 4*n), oslot(ks)[i], "0" if ks == 0 else acc(i, n))
    for ks in range(15):
        lastb = (ks == 14)
        if ks == KF + 1:
            e(f"s_mov_b32 s56, 0\ns_waitcnt vmcnt({need_wait([('pl', 0)])})")
            e("POLL:")
            e("v_xor_b32 v4, s30, v4\nv_xor_b32 v5, s30, v5\nv_xor_b32 v6, s30, v6\nv_xor_b32 v7, s30, v7")
            e("v_or3_b32 v4, v4, v5, v6\nv_or_b32 v4, v4, v7\ns_add_u32 s56, s56, 1\nv_readfirstlane_b32 s57, v4")
            e("s_cmp_eq_u32 s57, 0\ns_cbranch_scc1 POLL_OK\ns_cmp_ge_u32 s56, 0x40000\ns_cbranch_scc1 POLL_OK")
            e(f"buffer_load_dwordx4 {pl}, v{V_ZERO}, s[36:39], s91 offen sc1\ns_waitcnt vmcnt(0)\ns_branch POLL")
            e("POLL_OK:")
            stamp(e)
            if ks == 4:
                e.all(o_loads(4)); log.extend([("o", 4)]*5); nexto = 5
        if not lastb: MS = [M(ks, i, n) for n in range(10) for i in range(5)]
        else: MS = [M(k2, i, n) for k2 in (14, 15) for n in range(5, 10) for i in range(5)] + [M(k2, i, n) for k2 in (14, 15) for n in range(5) for i in range(5)]
        G = [dict(s=[], m=[], v=[]) for _ in range(len(MS))]
        if ks > 0:
            tags = [("wl", chunk_needed(ks+1))] + ([("o", ks)] if ks >= 4 else []) + ([("os", 3)] if ks == KF else [])
            e(f"s_waitcnt vmcnt({min(63, need_wait(tags))}) lgkmcnt(0)")
            G[0]["s"].append("s_barrier")
        else: e("s_waitcnt lgkmcnt(0)")
        if OPT.get("prof") == 4:
            G[40]["s"].append("s_memrealtime s[96:97]")
            if ks > 0: e(f"v_writelane_b32 v95, s96, {32+ks-1}")
        d = []; lo = 4; hi = 48
        if ks == KF:
            G[1]["m"].append((("fl", 0), f"buffer_store_dword v{V_ONE}, v{V_ZERO}, s[36:39], s78 offen sc1"))
            G[PG]["m"].append((("pl", 0), f"buffer_load_dwordx4 {pl}, v{V_ZERO}, s[36:39], s91 offen sc1"))
            hi = PG - 1
        budget = OPT.get("ldpre", 4) if ks <= KF else OPT.get("ld1", 10) if ks == KF + 1 else OPT.get("ldk", 10) + carry
        while budget > 2:
            can_o = ks > KF and nexto < 16 and (nexto - 10 < ks if nexto >= 10 else True)
            can_c = nextc < 20 and (nextc < 10 or 8*(nextc-10) + 8 <= 10*(ks+1))
            c_urgent = can_c and (8*nextc)//10 - 1 - ks <= OPT.get("curg", 2)
            if can_c and (c_urgent or not can_o or nexto - ks >= OPT.get("olead", 3)):
                tag, ins = wo_chunk(nextc); d += [(tag, x) for x in ins]; nextc += 1; budget -= 4
            elif can_o: d += [(("o", nexto), x) for x in o_loads(nexto)]; nexto += 1; budget -= 5
            else: break
        carry = budget if ks > KF + 1 else 0
        if ks == KF + 1: lo = 3; hi = 3 + 3*sum(x.startswith("buffer") for _, x in d)
        reads = w_reads(ks+1, [5,6,7,8,9,0,1,2,3,4] if ks >= 13 else range(10))
        nd = sum(x.startswith("buffer") for _, x in d)
        dg = [lo + (k*(hi-lo))//max(nd, 1) for k in range(nd)]
        prev = 0; pend = []; k = 0
        for tag, x in d:
            if x.startswith("buffer"):
                gp = dg[k]; k += 1
                av = [q_ for q_ in range(prev+1, gp) if not G[q_]["m"]] or [gp-1]
                for n_, p in enumerate(pend): G[av[min(len(av)-1, (n_*len(av))//len(pend))]]["s"].append(p)
                pend = []; G[gp]["m"].append((tag, x)); prev = gp
            else: pend.append(x)
        for n_, p in enumerate(pend): G[min(49, prev+1+n_)]["s"].append(p)
        gi = 1
        while reads:
            if not G[gi]["m"]: G[gi]["v"].append(reads.pop(0))
            gi += 1 if lastb else 2 if not G[gi]["m"] else 1
        if lastb:
            G[23]["s"].append(f"s_waitcnt vmcnt(0) lgkmcnt(0)")
            e("s_and_b32 s56, s40, 1\ns_mul_i32 s56, s56, 25600\ns_mul_i32 s57, s46, 0x18000\ns_add_u32 s57, s57, s56\ns_sub_u32 s58, 1, s46\ns_mul_i32 s58, s58, 0x18000\ns_add_u32 s58, s58, s56")
            G[30]["v"] += [f"v_add_u32 v88, s57, v{V_L16}", f"v_add_u32 v89, s58, v{V_L16}"]
            for t in range(25): G[50 + (t*46)//25]["v"].append(f"ds_write_b128 v88, {ar(4*t)} offset:{t*1024}")
        for m, g_ in zip(MS, G):
            e(m); e.all(g_["s"])
            for tag, x in g_["m"]: e(x); log.append(tag)
            e.all(g_["v"])
    assert nextc == 20 and nexto == 16, (nextc, nexto)
    stamp(e)
    e(f"s_lshl_b32 s50, s41, 2\ns_add_u32 s50, s50, s89\ns_lshl_b32 s51, s50, 2\ns_add_u32 s48, s51, s40\ns_lshl_b32 s48, s48, 2\ns_add_u32 s48, s48, s88\ns_mul_i32 s48, s48, {PSZ}\ns_add_u32 s48, s48, {WS_P}")
    e(f"s_lshl_b32 s55, s50, 7\ns_add_u32 s55, s55, {WS_FLAG2}\ns_lshl_b32 s56, s88, 2\ns_add_u32 s54, s55, s56")
    e("s_waitcnt lgkmcnt(0)\ns_barrier")
    TMP = [r for r in range(V_O, 256, 4) if r not in KEEP][:25]
    for t in range(25): e(f"ds_read_b128 {vr(TMP[t])}, v89 offset:{t*1024}")
    for j in range(13):
        ts = [2*j, 2*j+1] if j < 12 else [24]
        e(f"s_waitcnt lgkmcnt({min(15, 24 - ts[-1])})")
        for t in ts:
            for r in range(0, 4, 2): e(f"v_pk_add_f32 {vr(KEEP[t]+r,2)}, {vr(KEEP[t]+r,2)}, {vr(TMP[t]+r,2)}")
        for k, t in enumerate(ts):
            e(f"v_cvt_pk_bf16_f32 v{TMP[2*j]+2*k}, v{KEEP[t]}, v{KEEP[t]+1}\nv_cvt_pk_bf16_f32 v{TMP[2*j]+2*k+1}, v{KEEP[t]+2}, v{KEEP[t]+3}")
        e(f"buffer_store_dwordx4 {vr(TMP[2*j])}, v{V_L16}, s[36:39], s48 offen offset:{(j%4)*1024} sc1")
        if j % 4 == 3: e("s_add_u32 s48, s48, 4096")
    srd(e, 8, 14, OUT_BYTES)
    e(f"s_add_u32 s48, s51, s88\ns_mul_i32 s48, s48, {4*PSZ}\ns_add_u32 s48, s48, {WS_P}\ns_lshl_b32 s56, s40, 10\ns_add_u32 s48, s48, s56")
    e("v_and_b32 v8, 15, v2\nv_mul_u32_u24 v8, 1280, v8\nv_lshrrev_b32 v9, 4, v2\nv_lshl_add_u32 v8, v9, 3, v8")
    e(f"s_lshl_b32 s52, s41, 1\ns_and_b32 s56, s88, 1\ns_add_u32 s52, s52, s56\ns_mul_i32 s52, s52, {80*1280}")
    e("s_lshl_b32 s53, s89, 1\ns_lshr_b32 s56, s88, 1\ns_add_u32 s53, s53, s56\ns_mul_i32 s53, s53, 160\ns_add_u32 s52, s52, s53")
    e("s_waitcnt vmcnt(0)\ns_barrier")
    e("s_cmp_lg_u32 s40, 0\ns_cbranch_scc1 NOFLAG2")
    e(f"buffer_store_dword v{V_ONE}, v{V_ZERO}, s[36:39], s54 offen sc1")
    e("NOFLAG2:")
    stamp(e)
    e("s_mov_b32 s56, 0\nPOLL2:")
    e(f"buffer_load_dwordx4 v[12:15], v{V_ZERO}, s[36:39], s55 offen sc1\ns_add_u32 s56, s56, 1\ns_waitcnt vmcnt(0)")
    e("v_xor_b32 v12, s30, v12\nv_xor_b32 v13, s30, v13\nv_xor_b32 v14, s30, v14\nv_xor_b32 v15, s30, v15")
    e("v_or3_b32 v12, v12, v13, v14\nv_or_b32 v12, v12, v15\ns_nop 0\nv_readfirstlane_b32 s57, v12")
    e("s_cmp_eq_u32 s57, 0\ns_cbranch_scc1 POLL2_OK\ns_cmp_lt_u32 s56, 0x40000\ns_cbranch_scc1 POLL2")
    e("POLL2_OK:")
    stamp(e)
    e("s_cmp_eq_u32 s40, 0\ns_cselect_b32 s58, 0, 0x7000000")
    for k in range(4):
        for p in range(4):
            e(f"s_add_u32 s57, s48, {p*PSZ + k*4096}" + ("\ns_add_u32 s57, s57, s58" if k == 3 else ""))
            e(f"buffer_load_dwordx4 {vr(96 + 16*k + 4*p)}, v{V_L16}, s[36:39], s57 offen sc1")
    e("s_mov_b32 s59, 0xffff0000")
    for k in range(4):
        base = 96 + 16*k
        if k == 3: e("s_cmp_lg_u32 s40, 0\ns_cbranch_scc1 K2_FIN")
        for h in range(2 if k < 3 else 1):
            e(f"s_lshl_b32 s54, s40, 1\ns_add_u32 s54, s54, {8*k + h}\ns_mul_i32 s55, s54, 52\ns_lshr_b32 s55, s55, 8")
            e(f"s_mul_i32 s56, s55, 5\ns_sub_u32 s56, s54, s56\ns_mul_i32 s56, s56, {16*1280}\ns_lshl_b32 s55, s55, 5\ns_add_u32 s55, s55, s56\ns_add_u32 s{70+h}, s55, s52")
        e(f"s_waitcnt vmcnt({4*(3-k) + 2*k})")
        for r in range(4 if k < 3 else 2):
            lo = 16 + 2*r; hi = 17 + 2*r
            e(f"v_lshlrev_b32 v{lo}, 16, v{base+r}\nv_and_b32 v{hi}, s59, v{base+r}")
            for p in range(1, 4):
                e(f"v_lshlrev_b32 v24, 16, v{base+4*p+r}\nv_and_b32 v25, s59, v{base+4*p+r}\nv_pk_add_f32 {vr(lo,2)}, {vr(lo,2)}, v[24:25]")
            e(f"v_cvt_pk_bf16_f32 v{base+r}, v{lo}, v{hi}")
        for h in range(2 if k < 3 else 1):
            e(f"buffer_store_dwordx2 {vr(base+2*h,2)}, v8, s[8:11], s{70+h} offen")
    e("s_cmp_lg_u32 s2, 0\ns_cbranch_scc1 K2_FIN")
    e(f"s_mov_b32 s55, {WS_EPOCH}\nbuffer_store_dword v{V_ONE}, v{V_ZERO}, s[36:39], s55 offen sc1")
    e("K2_FIN:")
    if OPT.get("prof"): e("s_waitcnt vmcnt(0)")
    stamp(e)
    stamp_out(e)
    e("s_endpgm")
    e("FALLBACK:")
    e("s_waitcnt vmcnt(0) lgkmcnt(0)\ns_barrier")
    e("s_mov_b32 s31, 0\ns_mov_b32 s61, 0x7000000\ns_mov_b32 s66, 0")
    for r in range(20): e(f"v_mov_b32 v{V_NEGM+r}, 0xff800000")
    e("FB_LOOP:")
    for tn in range(2):
        e(f"s_add_u32 s75, s74, s66\ns_add_u32 s75, s75, {tn*KV_HEAD}\ns_add_u32 m0, s74, {RING[tn]}\ns_nop 0")
        for k in range(2): e(f"buffer_load_dwordx4 v{V_CK+k}, s[80:83], s75 offen offset:{k*1024} lds")
    e("s_waitcnt vmcnt(0)\ns_barrier")
    e.all(k_reads(0, 0))
    e("s_waitcnt lgkmcnt(0)\ns_barrier")
    for i in range(5):
        S = V_S[0]
        for U in range(2):
            for s_ in range(4):
                e(mfma(vr(S+4*U), ar(A_K[0]+(U*4+s_)*4), ar(A_Q+(i*4+s_)*4), "0" if s_ == 0 else vr(S+4*U)))
        e("s_nop 7")
        for r in range(4): e(f"v_max3_f32 v{V_NEGM+4*i+r}, v{S+r}, v{S+4+r}, v{V_NEGM+4*i+r}")
        e("s_nop 3")
    e(f"s_add_u32 s66, s66, 8192\ns_cmp_lt_u32 s66, {KV_HEAD}\ns_cbranch_scc1 FB_LOOP")
    for j in range(4):
        for tn in range(4): plain(e, coop(tn, j))
    e("s_waitcnt vmcnt(0)\ns_barrier")
    e.all(k_reads(0, slotK(0)) + v_reads(0, slotV(0)))
    e("s_waitcnt lgkmcnt(0)\ns_branch ATT_MAX")
    e("K_END:\ns_endpgm")

def main(out):
    K1 = "standalone__mha_block_cached__near_ridge_kernel"
    hdr = open("standalone__mha_block_cached__near_ridge.s.ref").read().split("; Override")[0]
    s = hdr + "; @launch grid=(256,1,1) block=(256,1,1) lds=163840\n"
    s += '.amdgcn_target "amdgcn-amd-amdhsa--gfx950"\n.text\n'
    e = Em(); gen(e)
    import hazard
    e.L, nf = hazard.fix(e.L, verbose=OPT.get("hv", 0))
    if nf: print("hazard fixes:", nf)
    s += f".globl {K1}\n.p2align 8\n.type {K1},@function\n{K1}:\n" + e.text()
    s += f""".section .rodata,"a"
.p2align 6
.amdhsa_kernel {K1}
  .amdhsa_next_free_vgpr 512
  .amdhsa_next_free_sgpr 102
  .amdhsa_accum_offset 256
  .amdhsa_group_segment_fixed_size 0
  .amdhsa_kernarg_size 64
  .amdhsa_user_sgpr_count 2
  .amdhsa_user_sgpr_kernarg_segment_ptr 1
  .amdhsa_system_sgpr_workgroup_id_x 1
  .amdhsa_float_denorm_mode_32 3
.end_amdhsa_kernel
"""
    open(out, "w").write(s)

if __name__ == "__main__":
    for a in sys.argv[2:]:
        k, v = a.split("="); OPT[k] = int(v)
    main(sys.argv[1])
```

```python
import sys, math, struct

class Em:
    def __init__(self): self.L = []; self.ns = 0; self.pv = 95
    def __call__(self, s):
        for ln in s.strip("\n").split("\n"):
            ln = ln.strip()
            if ln: self.L.append("    " + ln if not ln.endswith(":") else ln)
    def all(self, lst):
        for x in lst: self(x)
    def text(self): return "\n".join(self.L) + "\n"

def vr(b, n=4): return "v[%d:%d]" % (b, b + n - 1)
def ar(b, n=4): return "a[%d:%d]" % (b, b + n - 1)
def mfma(d, a, b, c): return "v_mfma_f32_16x16x32_bf16 %s, %s, %s, %s" % (d, a, b, c)
def f2u(f): return struct.unpack("<I", struct.pack("<f", f))[0]
OPT = dict(lump=4, lump1=74, rs=2, rdl=1, pk=2, pv=3, nwc=7, w0=72, kvend=66, ckp=60, cstep=3, nt_kv=1, map=1, wo_il=1, wo_mid=3, wo_poll=0, ldper=7, o0=2, ek=1, wend=28, k_rot=4, woa=3, pace=5)

import os
PAD = int(os.environ.get("PAD", "1"))
X_BYTES = 16*160*640*2
KV_HEAD = 512*128*2
WQ_BYTES = 640*4096*2
WO_BYTES = 4096*640*2
OUT_BYTES = X_BYTES
STR = 163840 + 8192
WS_WO = 1024*20480
WS_P = WS_WO + 32*STR
PSZ = 13312
WS_FLAG = WS_P + 1024*PSZ
WS_FLAG2 = WS_FLAG + 8192
WS_WFLAG = WS_FLAG + 16384
WS_EPOCH = WS_FLAG + 20480
WS_USED = WS_FLAG + 24576
SCALE = math.log2(math.e) / math.sqrt(128.0)
PROF_OFF = 64 << 20

RING = [0x00000, 0x02000, 0x10000, 0x12000]
SLOT = 0x4000
def slotK(t): return t % 4 if t <= 8 else 1 + (t - 9) % 3
def slotV(t): return slotK(t) ^ 2
def prevuse(t): return t - 4 if t <= 11 else t - 3
PREG = [None, 0, 2, 3, 1]; PSTEP = [None, 8, 13, 14, 15]
def slotT(tn, t): return slotV(t) if tn >= 2 else slotK(t)
WQB0 = 0x8000; WQSTEP = 0x4000; NWQ = 4
XBUF = [0x1D000, 0x22000]; XSZ = 20480; WORAW = 0x18000

V_O = 96
def vO(i, dt): return V_O + (i*8 + dt)*4
V_S = [64, 72]; V_P = [80, 84]; V_NEGM = 40
L_REG = [60, 61, 62, 63, 88]; L_SAVE = 89
V_KA = 4; V_VA = 8; V_DKV = 16; T = 20
V_WQA = 40; V_XA = 48; V_DS = 50
V_DX = 54; V_CK = 16; V_CV = 18; V_WOD = 64; V_WOR = 39
V_LM = {1: 20, 3: 24}
LM_ALL = {0: 32, 1: 20, 2: 36, 3: 24, 4: 60}; A_ONES = 228; V_FL = 28; V_OWN = 32
V_L16 = 90; V_L16B = 91; V_ZERO = 92; V_ONE = 93; V_CNT = 94
A_Q = 0
A_K = [80, 112]; A_V = [144, 176]
A_WQF = [80, 112]; A_XF = [144, 176]

def ATOM(): return "s_nop 0" if OPT.get("x_noatom") else f"buffer_atomic_add v{V_ONE}, v{V_ZERO}, s[92:95], 0 offen sc1"
def stamp(e):
    if OPT.get("prof"):
        k = e.ns; e.ns += 1; assert k < 15
        if k == 0: e(f"v_mov_b32 v{e.pv}, 0")
        e(f"s_memrealtime s[96:97]\ns_memtime s[98:99]\ns_waitcnt lgkmcnt(0)")
        e(f"v_writelane_b32 v{e.pv}, s96, {k}\nv_writelane_b32 v{e.pv}, s98, {16+k}")
def stamp_out(e):
    if not OPT.get("prof"): return
    if OPT.get("leak") is not None:
        j = OPT["leak"]
        e(f"s_cmp_lg_u32 s2, 37\ns_cbranch_scc1 K_END\ns_cmp_lg_u32 s40, 0\ns_cbranch_scc1 K_END")
        e(f"v_readlane_b32 s70, v{e.pv}, 0\nv_readlane_b32 s71, v{e.pv}, {j}\nv_readlane_b32 s73, v{e.pv}, {OPT.get('leak0', 0)}\ns_nop 3\ns_sub_u32 s71, s71, s73\ns_mul_i32 s71, s71, {OPT.get('leakk', 10)}")
        if OPT.get("leakfix"): e(f"s_mov_b32 s71, {OPT['leakfix']}")
        e("LEAK:\ns_sleep 4\ns_memrealtime s[96:97]\ns_waitcnt lgkmcnt(0)\ns_sub_u32 s72, s96, s70\ns_cmp_lt_u32 s72, s71\ns_cbranch_scc1 LEAK")
        return
    if OPT.get("dbgout"):
        e(f"s_cmp_lg_u32 s2, {OPT['dbgout']}\ns_cbranch_scc1 K_END\ns_cmp_lg_u32 s40, 0\ns_cbranch_scc1 K_END")
        e(f"s_mov_b32 s76, s16\ns_and_b32 s77, s17, 0xffff\ns_mov_b32 s78, 64\ns_mov_b32 s79, 0x20000")
        e(f"v_readfirstlane_b32 s75, v{e.pv}\nv_lshlrev_b32 v11, 2, v0\ns_nop 1\nv_subrev_u32 v10, s75, v{e.pv}")
        e(f"buffer_store_dword v10, v11, s[76:79], 0 offen")
        return
    e(f"s_mov_b32 s76, s18\ns_and_b32 s77, s19, 0xffff\ns_mov_b32 s78, {PROF_OFF + (1<<20)}\ns_mov_b32 s79, 0x20000")
    e(f"s_lshl_b32 s75, s2, 10\ns_add_u32 s75, s75, {PROF_OFF}")
    e("v_lshlrev_b32 v11, 2, v0")
    e(f"buffer_store_dword v{e.pv}, v11, s[76:79], s75 offen")

def srd(e, d, p, n):
    e(f"s_mov_b32 s{d}, s{p}\ns_and_b32 s{d+1}, s{p+1}, 0xffff\ns_mov_b32 s{d+2}, {n}\ns_mov_b32 s{d+3}, 0x20000")
def is_m0(x): return x.split(",")[0].endswith("m0")
def plain(e, lst):
    for x in lst:
        e(x)
        if is_m0(x): e("s_nop 0")

def fill_gaps(gaps, start, d, reads, dma_first=True):
    gi = start; ri = 0; di = 0
    d = list(d)
    while ri < len(reads) or di < len(d):
        assert gi < len(gaps), (gi, ri, di, len(d))
        g_ = gaps[gi]; m0w = False
        if di < len(d) and not d[di].startswith("buffer"):
            m0w = is_m0(d[di]); g_.append(d[di]); di += 1
            if ri >= len(reads) and di < len(d) and not d[di].startswith("buffer") and not m0w:
                m0w = is_m0(d[di]); g_.append(d[di]); di += 1
        if di < len(d) and d[di].startswith("buffer") and not m0w and (dma_first or gi % 2 == 1 or ri >= len(reads)):
            g_.append(d[di]); di += 1
        else:
            took = reads[ri:ri+2]; g_ += took; ri += len(took)
        gi += 1
    return gi

def gen(e):
    global V_LM
    if OPT.get("rs") == 0: V_LM = {}
    if OPT.get("rs") == 2:
        V_LM = dict(LM_ALL); L_REG[:] = [LM_ALL[i] for i in range(5)]
    nt = " nt" if OPT["nt_kv"] else ""
    TK = OPT.get("touch_kv", 0)
    xw_nt = " nt" if OPT.get("xw_nt") else ""
    WE = OPT.get("wo_start", 1)
    e("s_cmp_ge_u32 s2, 256\ns_cbranch_scc1 K_END")
    stamp(e)
    if OPT.get("x_blk") == 1:
        for k in range(2048): e("v_mov_b32 v100, 0x12345678")
    if OPT.get("x_blk") == 2:
        e("s_mov_b32 s40, 0\nXBLK:")
        for k in range(128): e("v_mov_b32 v100, 0x12345678")
        e("s_add_u32 s40, s40, 1\ns_cmp_lt_u32 s40, 16\ns_cbranch_scc1 XBLK")
    e("s_load_dwordx16 s[4:19], s[0:1], 0")
    if OPT.get("ipf", 1):
        e("s_getpc_b64 s[24:25]\nIPF_BASE:")
        if OPT.get("x_sl"): e("s_mov_b64 s[70:71], s[24:25]")
        e("s_lshr_b32 s26, s2, 3\ns_lshl_b32 s26, s26, 12\nv_lshl_add_u32 v96, v0, 4, s26")
        e("v_min_u32 v96, K_END-IPF_BASE-16, v96")
        e("v_mov_b32 v97, s25\nv_add_co_u32 v96, vcc, s24, v96\nv_addc_co_u32 v97, vcc, 0, v97, vcc")
        e("s_cmp_ge_u32 s26, K_END-IPF_BASE\ns_cbranch_scc1 IPF_SKIP")
        e("global_load_dwordx4 v[100:103], v[96:97], off")
        e("IPF_SKIP:")
    e("v_lshrrev_b32 v1, 6, v0\nv_and_b32 v2, 63, v0")
    e("v_readfirstlane_b32 s40, v1")
    e("v_and_b32 v3, 15, v2\nv_lshrrev_b32 v1, 4, v2")
    if OPT.get("badmap"): e("s_lshr_b32 s43, s2, 5\ns_and_b32 s44, s2, 31\ns_lshr_b32 s45, s44, 2\ns_xor_b32 s44, s44, s45")
    else: e(f"s_add_u32 s43, s2, {OPT.get('xoff', 0)}\ns_and_b32 s43, s43, 7\ns_lshr_b32 s44, s2, 3")
    mp = OPT.get("map", 0)
    if mp == 0:
        e("s_and_b32 s41, s43, 1\ns_lshl_b32 s41, s41, 3\ns_and_b32 s45, s44, 7\ns_add_u32 s41, s41, s45")
        e("s_lshr_b32 s42, s43, 1\ns_lshl_b32 s42, s42, 2\ns_lshr_b32 s45, s44, 3\ns_add_u32 s42, s42, s45")
    elif mp == 1:
        e("s_lshr_b32 s41, s43, 2\ns_lshl_b32 s41, s41, 3\ns_and_b32 s45, s44, 7\ns_add_u32 s41, s41, s45")
        e("s_and_b32 s42, s43, 3\ns_lshl_b32 s42, s42, 2\ns_lshr_b32 s45, s44, 3\ns_add_u32 s42, s42, s45")
    elif mp == 2:
        e("s_and_b32 s41, s43, 1\ns_and_b32 s45, s44, 7\ns_lshl_b32 s45, s45, 1\ns_add_u32 s41, s41, s45")
        e("s_lshr_b32 s42, s43, 1\ns_lshl_b32 s42, s42, 2\ns_lshr_b32 s45, s44, 3\ns_add_u32 s42, s42, s45")
    e("s_lshr_b32 s46, s40, 1\ns_and_b32 s47, s40, 1")
    kr = OPT.get("k_rot", 1)
    if kr == 1:
        e("s_and_b32 s56, s44, 7\ns_mul_i32 s56, s56, 5\ns_lshr_b32 s56, s56, 2\ns_lshr_b32 s49, s44, 3\ns_mul_i32 s49, s49, 5\ns_lshr_b32 s49, s49, 1\ns_add_u32 s56, s56, s49")
        e("s_cmp_ge_u32 s56, 10\ns_cselect_b32 s49, 10, 0\ns_sub_u32 s56, s56, s49")
    elif kr == 2:
        e("s_lshr_b32 s49, s44, 3\ns_add_u32 s56, s44, s49\ns_and_b32 s56, s56, 3\ns_mul_i32 s56, s56, 5\ns_lshr_b32 s56, s56, 1")
    elif kr == 4:
        e("s_lshr_b32 s49, s43, 2\ns_xor_b32 s56, s43, s49\ns_and_b32 s56, s56, 1\ns_mul_i32 s56, s56, 5")
    elif kr == 5:
        e("s_lshr_b32 s49, s43, 2\ns_lshl_b32 s49, s49, 1\ns_add_u32 s56, s43, s49\ns_and_b32 s56, s56, 3\ns_mul_i32 s56, s56, 5\ns_lshr_b32 s56, s56, 1")
    elif kr == 6:
        e("s_lshr_b32 s49, s44, 3\ns_add_u32 s56, s44, s49\ns_and_b32 s56, s56, 1\ns_mul_i32 s56, s56, 5")
        e(f"s_lshr_b32 s49, s43, 2\ns_xor_b32 s49, s43, s49\ns_and_b32 s49, s49, 1\ns_mul_i32 s49, s49, {OPT.get('xo', 2)}\ns_add_u32 s56, s56, s49")
    elif kr == 3:
        e("s_lshr_b32 s49, s44, 3\ns_add_u32 s56, s44, s49\ns_and_b32 s56, s56, 1\ns_mul_i32 s56, s56, 5")
    else: e("s_mov_b32 s56, 0")
    e(f"v_lshrrev_b32 v{T}, 1, v3")
    e(f"v_and_b32 v{T+1}, 1, v2\nv_lshlrev_b32 v{T+1}, 4, v{T+1}")
    e(f"v_xor_b32 v{T+2}, v{T}, v1\nv_lshl_add_u32 v{T+2}, v{T+2}, 5, v{T+1}")
    e(f"v_lshl_add_u32 v{V_DS}, v1, 13, v{T+2}")
    e("s_lshl_b32 s48, s47, 17\ns_lshl_b32 s49, s46, 8\ns_add_u32 s48, s48, s49")
    e(f"v_add_u32 v{V_DS}, s48, v{V_DS}")
    e(f"v_add_u32 v{V_DS+1}, {4*8192-1024}, v{V_DS}")
    e(f"v_xor_b32 v{V_DS+2}, 0x80, v{V_DS}")
    e(f"v_add_u32 v{V_DS+3}, {12*8192-3072}, v{V_DS+2}")
    e(f"v_add_u32 v{V_DS+2}, {8*8192-2048}, v{V_DS+2}")
    e("s_lshl_b32 s50, s42, 9\ns_lshl_b32 s48, s56, 19\ns_add_u32 s50, s50, s48")
    e(f"s_lshl_b32 s52, s40, 12")
    e(f"v_lshrrev_b32 v{T+5}, 3, v2\nv_mul_u32_u24 v{T+5}, 1280, v{T+5}")
    e(f"v_and_b32 v{T+6}, 7, v2\nv_xor_b32 v{T+6}, v{T+6}, v1\ns_lshl_b32 s48, s47, 2\nv_xor_b32 v{T+6}, s48, v{T+6}")
    e(f"s_mul_i32 s48, s40, {40*1280}\nv_add_u32 v{T+5}, s48, v{T+5}")
    e(f"v_lshl_add_u32 v{V_DX}, v{T+6}, 4, v{T+5}")
    e(f"v_xor_b32 v{T+6}, 4, v{T+6}\nv_lshl_add_u32 v{V_DX+1}, v{T+6}, 4, v{T+5}")
    e(f"v_add_u32 v{V_DX+2}, {16*1280-2048}, v{V_DX}")
    e(f"v_add_u32 v{V_DX+3}, {24*1280}, v{V_DX+1}")
    e(f"v_add_u32 v{V_DX+4}, {32*1280-1024}, v{V_DX}")
    e(f"v_add_u32 v{V_DX+1}, {8*1280-1024}, v{V_DX+1}")
    e(f"s_mul_i32 s51, s41, {160*1280}\ns_add_u32 s55, s51, 1280\ns_lshl_b32 s48, s56, 7\ns_add_u32 s51, s51, s48")
    e(f"s_mul_i32 s57, s40, 5120\ns_add_u32 s53, s57, {XBUF[0]}\ns_add_u32 s90, s57, {WORAW}\ns_lshl_b32 s58, s53, 1\ns_add_u32 s58, s58, {XSZ}")
    e("s_waitcnt lgkmcnt(0)")
    srd(e, 24, 10, WQ_BYTES); srd(e, 20, 4, X_BYTES)
    e(f"s_add_u32 s28, s18, {WS_EPOCH}\ns_addc_u32 s29, s19, 0\ns_load_dword s30, s[28:29], 0")
    def dma_wq(u):
        out = [f"s_add_u32 m0, s52, {WQB0 + (u % NWQ)*WQSTEP}"]
        out += [f"buffer_load_dwordx4 v{V_DS+j}, s[24:27], s50 offen offset:{j*1024}{xw_nt} lds" for j in range(4)]
        out += [f"s_add_u32 s50, s50, {32*8192}"]
        if u % 2 == 1: out += [f"s_cmp_ge_u32 s50, {WQ_BYTES}", f"s_cselect_b32 s54, {WQ_BYTES}, 0", "s_sub_u32 s50, s50, s54"]
        return out
    def dma_x(v, part):
        if part == 0:
            return [f"s_add_u32 m0, s57, {XBUF[v&1]}"] + [f"buffer_load_dwordx4 v{V_DX+j}, s[20:23], s51 offen offset:{j*1024}{xw_nt} lds" for j in range(3)]
        return [f"s_add_u32 m0, s57, {XBUF[v&1]+3072}"] + [f"buffer_load_dwordx4 v{V_DX+3+j}, s[20:23], s51 offen offset:{j*1024}{xw_nt} lds" for j in range(2)] + \
               ["s_add_u32 s51, s51, 128", "s_cmp_ge_u32 s51, s55", "s_cselect_b32 s54, 1280, 0", "s_sub_u32 s51, s51, s54"]
    plain(e, dma_wq(0) + dma_x(0, 0) + dma_x(0, 1))
    srd(e, 36, 18, WS_USED); srd(e, 32, 12, WO_BYTES)
    e("s_lshl_b32 s48, s41, 4\ns_add_u32 s48, s48, s42\ns_lshl_b32 s48, s48, 18")
    e(f"s_add_u32 s80, s6, s48\ns_addc_u32 s81, s7, 0\ns_and_b32 s81, s81, 0xffff\ns_mov_b32 s82, {2*KV_HEAD}\ns_mov_b32 s83, 0x20000")
    e(f"s_add_u32 s84, s8, s48\ns_addc_u32 s85, s9, 0\ns_and_b32 s85, s85, 0xffff\ns_mov_b32 s86, {2*KV_HEAD}\ns_mov_b32 s87, 0x20000")
    e(f"v_xor_b32 v{T+13}, v3, v1\nv_lshlrev_b32 v{T+13}, 4, v{T+13}")
    e(f"v_lshl_add_u32 v{V_CK}, v1, 8, v{T+13}\ns_lshl_b32 s48, s47, 7\nv_xor_b32 v{V_CK}, s48, v{V_CK}\nv_xor_b32 v{V_CK+1}, 64, v{V_CK}")
    e(f"v_lshl_add_u32 v{V_CV}, v1, 8, v{T+2}\nv_xor_b32 v{V_CV+1}, 0x80, v{V_CV}")
    e("s_lshl_b32 s74, s40, 11")
    if OPT.get("kv_rot", 1):
        e("s_lshl_b32 s100, s44, 1\ns_lshr_b32 s48, s44, 3\ns_add_u32 s100, s100, s48\ns_and_b32 s100, s100, 15\ns_lshl_b32 s100, s100, 13")
        e(f"s_add_u32 s101, s100, {OPT.get('kv_rotd', 1)*8192}\ns_and_b32 s101, s101, 0x1ffff")
    else: e("s_mov_b32 s100, 0\ns_mov_b32 s101, 0")
    e("s_add_u32 s100, s100, s74\ns_add_u32 s101, s101, s74\ns_mov_b32 s79, 0x1ffff")
    e(f"v_lshrrev_b32 v{T+13}, 2, v3")
    e(f"v_and_b32 v{T+14}, 3, v3\nv_lshlrev_b32 v{T+14}, 3, v{T+14}")
    e(f"v_and_b32 v{T+15}, 1, v1\nv_lshl_or_b32 v{T+15}, v{T+15}, 2, v{T+13}")
    e(f"v_lshl_add_u32 v{T+15}, v{T+15}, 5, v{T+14}")
    e(f"v_lshl_add_u32 v{T+16}, v1, 3, v{T+13}\nv_lshl_add_u32 v{T+16}, v{T+16}, 8, v{T+15}")
    e(f"s_lshl_b32 s48, s46, 13\ns_add_u32 s48, s48, {WQB0}")
    e(f"v_add_u32 v{V_WQA}, s48, v{T+16}")
    for dt in range(1, 8): e(f"v_xor_b32 v{V_WQA+dt}, {dt<<5}, v{V_WQA}")
    e(f"v_lshl_add_u32 v{T+16}, v1, 2, v{T+13}\nv_lshl_add_u32 v{T+17}, v{T+16}, 8, v{T+15}")
    e(f"s_lshl_b32 s48, s46, 13\ns_add_u32 s49, s48, {RING[2]}")
    e(f"v_add_u32 v{V_VA}, s49, v{T+17}")
    for dt in range(1, 8): e(f"v_xor_b32 v{V_VA+dt}, {dt<<5}, v{V_VA}")
    e(f"v_mul_u32_u24 v{V_WOR}, 640, v{T+16}\nv_add_u32 v{V_WOR}, v{V_WOR}, v{T+14}")
    e(f"s_mul_i32 s49, s40, 160\ns_add_u32 s49, s49, {WORAW}\nv_add_u32 v{V_WOR}, s49, v{V_WOR}")
    e(f"v_and_b32 v{T+13}, 1, v1\nv_lshlrev_b32 v{T+13}, 1, v{T+13}\nv_lshrrev_b32 v{T+14}, 1, v1\nv_or_b32 v{T+13}, v{T+13}, v{T+14}")
    e(f"v_xor_b32 v{T+13}, v{T+13}, v3\nv_lshlrev_b32 v{T+13}, 4, v{T+13}\nv_lshl_add_u32 v{T+13}, v3, 8, v{T+13}")
    e(f"v_add_u32 v{V_KA}, s48, v{T+13}")
    for s in range(1, 4): e(f"v_xor_b32 v{V_KA+s}, {s<<6}, v{V_KA}")
    e(f"v_xor_b32 v{T+13}, v{T}, v1\nv_lshlrev_b32 v{T+13}, 4, v{T+13}\nv_lshl_add_u32 v{T+13}, v3, 7, v{T+13}")
    e(f"s_mul_i32 s48, s47, {80*128}\ns_add_u32 s48, s48, {XBUF[0]}")
    e(f"v_add_u32 v{V_XA}, s48, v{T+13}\nv_xor_b32 v{V_XA+1}, 64, v{V_XA}")
    e(f"v_lshlrev_b32 v{V_L16}, 4, v2\nv_add_u32 v{V_L16B}, 4096, v{V_L16}\nv_mov_b32 v{V_ZERO}, 0\n")
    e("s_lshr_b32 s88, s42, 2\ns_and_b32 s89, s42, 3")
    e(f"s_lshl_b32 s91, s41, 2\ns_add_u32 s91, s91, s88\ns_lshl_b32 s91, s91, 7\ns_add_u32 s91, s91, {WS_FLAG}\ns_lshl_b32 s48, s89, 2\ns_add_u32 s78, s91, s48")
    e(f"s_and_b32 s77, s2, 1\ns_lshl_b32 s77, s77, 7\ns_lshr_b32 s48, s2, 1\ns_add_u32 s77, s77, s48\ns_lshl_b32 s77, s77, 2\ns_add_u32 s77, s77, {WS_WFLAG}")
    e(f"s_lshr_b32 s93, s89, 1\ns_lshl_b32 s93, s93, 2\ns_add_u32 s93, s93, s88\ns_lshl_b32 s93, s93, 7\ns_add_u32 s93, s93, {WS_WFLAG}")
    e("s_cmp_eq_u32 s40, 0\ns_cselect_b32 s77, s77, 0x7000000\ns_cselect_b32 s93, s93, 0x7000000\ns_cselect_b32 s73, 1, 0\ns_mov_b32 s48, 0x70")
    e(f"s_lshl_b32 s49, s2, 2\ns_add_u32 s49, s49, s40\ns_cmp_eq_u32 s49, 1\ns_cselect_b32 s93, {WS_WFLAG}, s93\ns_cselect_b32 s73, 1, s73\ns_cselect_b32 s48, 0x3f0, s48")
    e(f"v_and_b32 v94, s48, v{V_L16}")
    for j in range(5):
        e(f"v_add_u32 v{T+13}, {64*j}, v2")
        e(f"v_mul_u32_u24 v{T+14}, 1639, v{T+13}\nv_lshrrev_b32 v{T+14}, 16, v{T+14}")
        e(f"v_mul_u32_u24 v{T+15}, 640, v{T+14}")
        e(f"v_lshl_add_u32 v{V_WOD+j}, v{T+13}, 4, v{T+15}")
        if 0 < j < 4: e(f"v_subrev_u32 v{V_WOD+j}, {j*1024}, v{V_WOD+j}")
    e(f"s_lshr_b32 s61, s2, 1\ns_mul_i32 s59, s61, {32*1280}\ns_and_b32 s48, s2, 1\ns_lshl_b32 s48, s48, 2\ns_add_u32 s48, s48, s40")
    e(f"s_and_b32 s49, s2, 1\ns_mul_i32 s49, s49, 640\ns_add_u32 s59, s59, s49\ns_mul_i32 s49, s40, {8*1280}\ns_add_u32 s59, s59, s49")
    e("s_lshr_b32 s64, s61, 5\ns_lshl_b32 s64, s64, 2\ns_lshr_b32 s67, s48, 1\ns_add_u32 s64, s64, s67\ns_lshl_b32 s64, s64, 1\ns_bfe_u32 s49, s61, 0x10002\ns_add_u32 s64, s64, s49")
    e(f"s_mul_i32 s64, s64, {STR}\ns_xor_b32 s48, s48, s49\ns_and_b32 s48, s48, 1\ns_mul_i32 s48, s48, 5120\ns_add_u32 s64, s64, s48")
    e("s_bfe_u32 s48, s61, 0x20003\ns_cmp_lt_u32 s48, s67\ns_addc_u32 s49, s48, 0\ns_cmp_eq_u32 s48, s67\ns_cselect_b32 s48, 0, s49")
    e(f"s_lshl_b32 s48, s48, 2\ns_and_b32 s61, s61, 3\ns_add_u32 s61, s61, s48\ns_mul_i32 s61, s61, 10240\ns_add_u32 s61, s61, s64\ns_add_u32 s61, s61, {WS_WO}")
    def wo_dma():
        return ["s_mov_b32 m0, s90"] + [f"buffer_load_dwordx4 v{V_WOD+j}, s[32:35], s59 offen offset:{j*1024} lds" for j in range(4)] + \
               ["s_add_u32 m0, s90, 4096", f"buffer_load_dwordx4 v{V_WOD+4}, s[32:35], s59 offen lds"]
    ntl = 0
    if OPT.get("tlbw", 0) == 2: plain(e, dma_wq(1) + dma_x(1, 0) + dma_x(1, 1) + dma_wq(2))
    if OPT.get("tlbw", 0):
        e("s_lshl_b32 s48, s41, 4\ns_add_u32 s48, s48, s42\ns_mul_i32 s70, s48, 81920")
        e(f"s_lshl_b32 s48, s41, 2\ns_add_u32 s48, s48, s89\ns_lshl_b32 s48, s48, 4\ns_add_u32 s48, s48, s88\ns_mul_i32 s71, s48, {PSZ}\ns_add_u32 s71, s71, {WS_P}")
        e(f"s_lshl_b32 s48, s42, 1\ns_mul_i32 s72, s48, {STR}\ns_add_u32 s72, s72, {WS_WO + 163840}")
        e("s_cmp_eq_u32 s40, 1\ns_cselect_b32 s70, s71, s70\ns_cmp_eq_u32 s40, 2\ns_cselect_b32 s70, s72, s70\ns_cmp_eq_u32 s40, 3\ns_cselect_b32 s70, s61, s70")
        e(f"buffer_load_dword v36, v{V_ZERO}, s[36:39], s70 offen sc1")
        srd(e, 8, 14, OUT_BYTES)
        e(f"s_mul_i32 s48, s41, {160*1280}")
        e("s_cmp_lt_u32 s40, 2\ns_cbranch_scc1 TLBA")
        e("s_cmp_eq_u32 s40, 2\ns_cbranch_scc1 TLBB")
        e(f"buffer_load_dword v37, v{V_ZERO}, s[8:11], s48 offen sc1\ns_branch TLBD")
        e(f"TLBB:\nbuffer_load_dword v37, v{V_ZERO}, s[32:35], s59 offen\ns_branch TLBD")
        e("TLBA:\ns_cmp_eq_u32 s40, 0\ns_cbranch_scc1 TLBC")
        e(f"buffer_load_dword v37, v{V_ZERO}, s[84:87], 0 offen nt\ns_branch TLBD")
        e(f"TLBC:\nbuffer_load_dword v37, v{V_ZERO}, s[80:83], 0 offen nt")
        e("TLBD:")
        ntl = 2
    if OPT.get("tlbw", 0) != 2: plain(e, dma_wq(1) + dma_x(1, 0) + dma_x(1, 1) + dma_wq(2))
    stamp(e)
    def coop(tensor, tile):
        sr = "s[84:87]" if tensor >= 2 else "s[80:83]"; vb = V_CV if tensor >= 2 else V_CK
        return [f"s_add_u32 s75, s{100 + (tensor & 1)}, {tile*8192}", "s_and_b32 s75, s75, s79"] + ([f"s_add_u32 s75, s75, {KV_HEAD}"] if tensor & 1 else []) + [f"s_add_u32 m0, s74, {RING[tensor] + slotT(tensor, tile)*SLOT}"] + \
               [f"buffer_load_dwordx4 v{vb+k}, {sr}, s75 offen offset:{k*1024}{(' nt' if OPT.get('nt_v' if tensor >= 2 else 'nt_k', OPT['nt_kv']) else '')} lds" for k in range(2)]
    def rd_wq(u):
        out = []; buf = u & 1; off = (u % NWQ)*WQSTEP
        for dt in range(8):
            out.append(f"ds_read_b64_tr_b16 {ar(A_WQF[buf]+4*dt,2)}, v{V_WQA+dt} offset:{off}")
            out.append(f"ds_read_b64_tr_b16 {ar(A_WQF[buf]+4*dt+2,2)}, v{V_WQA+dt} offset:{off+1024}")
        return out
    def rd_x(v, u): return [f"ds_read_b128 {ar(A_XF[u]+4*i)}, v{V_XA+u} offset:{(v&1)*XSZ + i*2048}" for i in range(5)]
    def qp_mfmas(half, first=False):
        return [mfma(vr(vO(i,dt)), ar(A_WQF[half]+4*dt), ar(A_XF[half]+4*i), "0" if first else vr(vO(i,dt))) for i in range(5) for dt in range(8)]
    def k_reads(buf, slot):
        return [f"ds_read_b128 {ar(A_K[buf]+(U*4+s)*4)}, v{V_KA+s} offset:{slot*SLOT+U*4096}" for U in range(2) for s in range(4)]
    def v_reads(buf, slot):
        out = []
        for dt in range(8):
            out.append(f"ds_read_b64_tr_b16 {ar(A_V[buf]+dt*4,2)}, v{V_VA+dt} offset:{slot*SLOT}")
            out.append(f"ds_read_b64_tr_b16 {ar(A_V[buf]+dt*4+2,2)}, v{V_VA+dt} offset:{slot*SLOT+4096}")
        return out
    W = lambda u: (("w", u), dma_wq(u)); X0 = lambda v: (("x", v), dma_x(v, 0)); X1 = lambda v: (("x", v), dma_x(v, 1))
    KV = lambda t, k: (("kv", k), coop(t, k))
    WST = [f"buffer_store_dwordx4 {ar(208+4*n)}, v{V_L16 if n<4 else V_L16B}, s[36:39], s61 offen offset:{(n%4)*1024} sc1" for n in range(5)]
    WOD = (("wo", 0), wo_dma())
    sched = {u: [] for u in range(20)}
    sched[0] = [W(3)]
    for u in range(16):
        if u % 2 == 0: sched[u] += [X0(u//2+2), X1(u//2+2)]
        sched[u] += [W(u+4)]
    WOA = OPT.get("woa", 3); WOR = WOA + 3
    sched[WOA] += [WOD]
    WQS = OPT.get("wst_q", 0)
    if WQS:
        for n in range(5): sched[WQS + n] += [(("st", 0), [WST[n]])]
    ek = OPT.get("ek", 1)
    if ek == 1: early_kv = {5: [KV(0,0), KV(1,0)], 9: [KV(2,0), KV(3,0)], 13: [KV(0,1), KV(1,1)]}
    elif ek == 2: early_kv = {5: [KV(0,0)], 7: [KV(1,0)], 9: [KV(2,0)], 11: [KV(3,0)], 13: [KV(0,1)], 15: [KV(1,1)]}
    elif ek == 3: early_kv = {11: [KV(0,0), KV(1,0)], 13: [KV(2,0), KV(3,0)], 15: [KV(0,1), KV(1,1)]}
    elif ek == 4: early_kv = {9: [KV(0,0), KV(1,0)], 11: [KV(0,1), KV(1,1)], 13: [KV(2,0), KV(3,0)]}
    elif ek == 5: early_kv = {8: [KV(0,0)], 9: [KV(1,0)], 10: [KV(0,1)], 11: [KV(1,1)], 13: [KV(2,0)], 14: [KV(3,0)]}
    elif ek == 8: early_kv = {5: [KV(0,0), KV(1,0)]}
    elif ek == 6: early_kv = {2: [KV(0,0)], 3: [KV(1,0)], 4: [KV(0,1)], 5: [KV(1,1)], 6: [KV(2,0)], 7: [KV(3,0)]}
    elif ek == 7: early_kv = {3: [KV(0,0), KV(1,0)], 5: [KV(2,0), KV(3,0)], 7: [KV(0,1), KV(1,1)]}
    for u, l in early_kv.items(): sched[u] += l
    sched[16] = [KV(2,1), KV(3,1), KV(0,2)]; sched[17] = [KV(1,2)]; sched[18] = [KV(2,2), KV(3,2)]; sched[19] = [KV(0,3), KV(1,3)]
    kv_late = [KV(2,3), KV(3,3)]
    if ek == 8:
        sched[16] = [KV(2,0), KV(3,0), KV(0,1)]; sched[17] = [KV(1,1), KV(2,1)]; sched[18] = [KV(3,1), KV(0,2)]; sched[19] = [KV(1,2), KV(2,2)]
        kv_late = [KV(3,2), KV(0,3), KV(1,3), KV(2,3), KV(3,3)]
    log = [("w",0)]*4 + [("x",0)]*5 + [("tl",0)]*(ntl if OPT.get("tlbw", 0) == 1 else 0) + [("w",1)]*4 + [("x",1)]*5 + [("w",2)]*4 + [("tl",0)]*(ntl if OPT.get("tlbw", 0) == 2 else 0)
    def need_wait(tags):
        last = max(i for i, x in enumerate(log) if x in tags); return len(log) - 1 - last
    wait0 = need_wait([("w",0), ("x",0)])
    waits = {}
    for u in range(20):
        tags = ([("w", u+1)] if u < 19 else []) + ([("x", (u+1)//2)] if u % 2 == 1 and u < 19 else [])
        if u == WOR: tags.append(("wo", 0))
        waits[u] = need_wait(tags) if tags else None
        for tag, ins in sched[u]: log.extend([tag] * sum(x.startswith("buffer") for x in ins))
    def substage(u, wait, first=False):
        half = u & 1
        ms = qp_mfmas(half, first)
        G = [dict(s=[], d=[], v=[]) for _ in range(40)]
        BG = 6 if half == 0 else 1
        G[BG-1]["s"].append(f"s_waitcnt vmcnt({min(63,wait)}) lgkmcnt(0)")
        G[BG]["s"].append("s_barrier")
        d = [x for _, ins in sched[u] for x in ins]
        nd = sum(x.startswith("buffer") for x in d)
        lo = BG + 3; hi = 37
        dg = [lo + (k*(hi-lo))//max(nd,1) for k in range(nd)]
        prev = lo - 2; pend = []; k = 0
        def flush(av):
            for n, p in enumerate(pend): G[av[min(len(av)-1, (n*len(av))//len(pend))]]["s"].append(p)
        for x in d:
            if x.startswith("buffer"):
                gp = dg[k]; k += 1
                if pend: flush(list(range(prev+1, gp)) or [gp-1]); pend = []
                G[gp]["d"].append(x); prev = gp
            else: pend.append(x)
        if pend: flush(list(range(prev+1, 40)))
        items = rd_wq(u+1)
        if half == 1: items = rd_x((u+1)//2, 0) + items
        if u == WOR:
            wr = []
            for n in range(5):
                wr += [f"ds_read_b64_tr_b16 {ar(208+4*n,2)}, v{V_WOR} offset:{n*32}", f"ds_read_b64_tr_b16 {ar(208+4*n+2,2)}, v{V_WOR} offset:{n*32+10240}"]
            items = items + wr
        gi = BG + 1
        fixed = {}
        if half == 1:
            xs = rd_x((u+1)//2, 1)
            for i in range(5): fixed[min(39, 8*i + 8)] = xs[i]
        while items or any(k >= gi for k in fixed):
            assert gi < 40, (u, len(items))
            if G[gi]["d"]:
                if gi in fixed: fixed[gi+1] = fixed.pop(gi)
                gi += 1; continue
            room = 2 if len(G[gi]["s"]) <= 1 else max(0, 3 - len(G[gi]["s"]))
            if gi >= 30: room = 2
            if gi in fixed: G[gi]["v"].append(fixed[gi]); room -= 1
            while room > 0 and items:
                if G[gi]["v"] and G[gi]["v"][-1].startswith("v_") and items[0].startswith("ds_"): break
                G[gi]["v"].append(items.pop(0)); room -= 1
            gi += 1
        if OPT.get("prof") == 5 and u >= 3:
            G[30]["s"].append("s_memrealtime s[96:97]")
            if u >= 4: e(f"s_waitcnt lgkmcnt(0)\nv_writelane_b32 v95, s96, {32+u-4}")
        if OPT.get("prof") == 3:
            G[30]["s"].append("s_memrealtime s[96:97]")
            e(f"s_waitcnt lgkmcnt(0)\ns_add_u32 m0, s76, 32\ns_add_u32 s76, s76, 1\nv_writelane_b32 v95, s96, m0")
        e("s_waitcnt lgkmcnt(1)" if half == 0 else "s_waitcnt lgkmcnt(0)")
        for m, g_ in zip(ms, G):
            if OPT.get("x_qhalf") and (ms.index(m) & 1): m = "s_nop 3"
            e(m); e.all(g_["d"] + g_["s"] + g_["v"] if g_["d"] else g_["s"] + g_["v"])
    e("s_mov_b32 s76, 0")
    e(f"s_waitcnt lgkmcnt(0)\ns_mul_i32 s30, s30, 0x9E3779B1\ns_add_u32 s30, s30, 0x7F4A7C15\ns_mov_b32 s31, 1\nv_mov_b32 v{V_ONE}, s30")
    e(f"s_waitcnt vmcnt({wait0})\ns_barrier")
    e.all(rd_x(0, 0) + rd_wq(0) + rd_x(0, 1))
    stamp(e)
    for u in range(19): substage(u, waits[u], first=(u == 0))
    stamp(e)
    e("s_waitcnt lgkmcnt(0)")
    ms = qp_mfmas(1)
    gaps = [[] for _ in range(40)]
    n19 = sum(x.startswith("buffer") for _, ins in sched[19] for x in ins)
    w19 = need_wait([("kv", 0)]) - n19
    gaps[0] = [f"s_waitcnt vmcnt({min(63, w19)})"]; gaps[1] = ["s_barrier"]
    d = [x for _, ins in sched[19] for x in ins] + [f"s_mov_b32 s68, {f2u(SCALE)}", "s_mov_b32 s69, s68"]
    fill_gaps(gaps, 2, d, k_reads(0, slotK(0)) + v_reads(0, slotV(0)), dma_first=False)
    for m, g_ in zip(ms, gaps):
        e(m); e.all(g_)
    stamp(e)
    def conv(i):
        out = []
        for s in range(4):
            b0 = vO(i, 2*s); t = T + 4*s
            out += [f"v_pk_mul_f32 {vr(b0+r,2)}, {vr(b0+r,2)}, s[68:69]" for r in range(0, 8, 2)]
            out += [f"v_cvt_pk_bf16_f32 v{t+r}, v{b0+2*r}, v{b0+2*r+1}" for r in range(4)]
        for s in range(4):
            t = T + 4*s
            out += [f"v_permlane16_swap_b32 v{t}, v{t+2}", f"v_permlane16_swap_b32 v{t+1}, v{t+3}"]
        out += [f"v_accvgpr_write_b32 a{A_Q+i*16+r}, v{T+r}" for r in range(16)]
        out += ["s_nop 1"]
        return out
    def prepass(i):
        return [mfma(vr(V_NEGM+4*i), ar(A_K[0]+s*4), ar(A_Q+(i*4+s)*4), "0" if s == 0 else vr(V_NEGM+4*i)) for s in range(4)]
    for i in range(5):
        e.all(conv(i))
        if i >= 5 - len(kv_late):
            tag, ins = kv_late[i - (5 - len(kv_late))]; plain(e, ins); log.extend([tag]*2)
        if i == 0: e("s_waitcnt lgkmcnt(0)")
        e.all(prepass(i))
    e("ATT_MAX:")
    for i in range(5): e(f"v_mov_b32 v{L_REG[i]}, 0")
    e(f"v_mov_b32 v{T}, 0x3f803f80")
    for r in range(4): e(f"v_accvgpr_write_b32 a{A_ONES+r}, v{T}")
    e(f"s_lshl_b32 s64, s42, 1\ns_add_u32 s64, s64, s46\ns_mul_i32 s64, s64, {STR}\ns_add_u32 s64, s64, {WS_WO}")
    e(f"s_lshl_b32 s48, s47, 12\ns_add_u32 s65, s64, s48")
    e("s_mul_i32 s60, s46, 0x18000\ns_add_u32 s62, s60, s48\ns_xor_b32 s63, s62, 0x8000\ns_lshl_b32 s92, s46, 14\ns_add_u32 s92, s92, 0x20000\ns_add_u32 s92, s92, s48")
    for i in range(5):
        n = V_NEGM + 4*i
        e(f"v_max3_f32 v{n}, v{n}, v{n+1}, v{n+2}\nv_max_f32 v{n}, v{n}, v{n+3}\nv_mov_b32 v{n+1}, v{n}")
    e("s_nop 1")
    for i in range(5): e(f"v_permlane16_swap_b32 v{V_NEGM+4*i}, v{V_NEGM+4*i+1}")
    for i in range(5):
        n = V_NEGM + 4*i
        e(f"v_max_f32 v{n}, v{n}, v{n+1}\nv_mov_b32 v{n+1}, v{n}")
    e("s_nop 1")
    for i in range(5): e(f"v_permlane32_swap_b32 v{V_NEGM+4*i}, v{V_NEGM+4*i+1}")
    for i in range(5):
        n = V_NEGM + 4*i
        e(f"v_max_f32 v{n}, v{n}, v{n+1}")
        e(f"v_sub_f32 v{n}, 0, v{n}\nv_mov_b32 v{n+1}, v{n}\nv_mov_b32 v{n+2}, v{n}\nv_mov_b32 v{n+3}, v{n}")
    e("ATT_MAIN:")
    e("s_nop 1")
    def qk(u):
        t, i = divmod(u, 5); kb = A_K[t & 1]; S = V_S[u & 1]
        return [mfma(vr(S+4*U), ar(kb+(U*4+s)*4), ar(A_Q+(i*4+s)*4), vr(V_NEGM+4*i) if s == 0 else vr(S+4*U)) for U in range(2) for s in range(4)]
    def pv(u):
        t, i = divmod(u, 5); vb = A_V[t & 1]; P = V_P[u & 1]
        out = [mfma(vr(vO(i,dt)), ar(vb+dt*4), vr(P), "0" if t == 0 else vr(vO(i,dt))) for dt in range(8)]
        if i in V_LM: out.insert(8 if u < 75 else 0, mfma(vr(V_LM[i]), ar(A_ONES), vr(P), "0" if t == 0 else vr(V_LM[i])))
        return out
    def ex(u, r): S = V_S[u & 1]; return f"v_exp_f32 v{S+r}, v{S+r}"
    def cv(u, r): S = V_S[u & 1]; P = V_P[u & 1]; return f"v_cvt_pk_bf16_f32 v{P+r}, v{S+2*r}, v{S+2*r+1}"
    def ad(u, r):
        if u % 5 in V_LM: return []
        S = V_S[u & 1]; l = L_REG[u % 5]; return [f"v_add_f32 v{l}, v{S+r}, v{l}"]
    e.all(qk(0))
    e("s_nop 3")
    for r in range(4): e(ex(0, r))
    e(cv(0, 0)); e(cv(0, 1)); e(ex(0, 4))
    for r in range(4): e.all(ad(0, r))
    stamp(e)
    def wo_chunk(c):
        p = (8*c) % 80; r = p >> 4; off = (p & 15)*1024
        m0 = f"s_add_u32 m0, {'s92' if r == 0 else 's62' if PREG[r] < 2 else 's63'}, {off + (0 if r == 0 else (PREG[r] & 1)*SLOT)}"
        return (("wl", c), [f"s_add_u32 s75, s65, {c*8192}", m0] +
                [f"buffer_load_dwordx4 v{V_L16}, s[36:39], s75 offen offset:{j*1024} sc1 lds" for j in range(4)])
    MS = []; G = []; P0 = []
    for u in range(80):
        last = (u == 79)
        ms = (qk(u+1) if not last else []) + pv(u)
        g = [dict(s=[], m=[], v=[], s2=[], pre=[]) for _ in range(len(ms))]
        if not last:
            g[1]["v"].append(ex(u, 5)); g[3]["v"].append(ex(u, 6)); g[5]["v"].append(ex(u, 7))
            g[0]["v"] += ad(u, 4); g[2]["v"] += [cv(u, 2)] + ad(u, 5); g[4]["v"] += ad(u, 6); g[6]["v"] += [cv(u, 3)] + ad(u, 7)
            for k, gp in enumerate((7, 9, 11, 13, 15)): g[gp]["v"].append(ex(u+1, k))
            g[8]["v"] += ad(u+1, 0); g[10]["v"] += [cv(u+1, 0)] + ad(u+1, 1); g[12]["v"] += ad(u+1, 2); g[14]["v"] += [cv(u+1, 1)] + ad(u+1, 3)
        else:
            G[-1]["v"] += [ex(u, 5), ex(u, 6), ex(u, 7)] + ad(u, 4) + [cv(u, 2)] + ad(u, 5) + [cv(u, 3)] + ad(u, 6) + ad(u, 7)
        P0.append(len(G)); MS += ms; G += g
    NG = len(G); P0.append(NG)
    LUMP = OPT.get("lump", 0)
    if LUMP:
        for u in range(OPT.get("lump0", 0), OPT.get("lump1", 79)):
            for k0 in range(P0[u], P0[u] + 16, LUMP):
                allv = [x for k in range(k0, k0 + LUMP) for x in G[k]["v"]]
                for k in range(k0, k0 + LUMP): G[k]["v"] = []
                if OPT.get("lsort", 1):
                    ex_ = [x for x in allv if x.startswith("v_exp")]; ot = [x for x in allv if not x.startswith("v_exp")]
                    exd = {x.split()[1].rstrip(",") for x in ex_}
                    indep = [x for x in ot if not any(r in exd for r in x.replace(",", "").split()[2:])]
                    dep = [x for x in ot if x not in indep]
                    dep.sort(key=lambda x: 0 if x.startswith("v_cvt") else 1)
                    allv = ex_ + indep + dep if not (k0 - P0[u] <= 7 < k0 - P0[u] + LUMP) else ex_[:-1] + indep + dep + ex_[-1:]
                G[k0 + LUMP - 1]["v"] = allv
    def used(g_): return sum(2 if x.startswith("v_exp") else 1 for x in g_["v"]) + sum(2 if isinstance(x, tuple) else 1 for x in g_["m"])
    PK = OPT.get("pk", 2); PVp = OPT.get("pv", 4)
    SK = {t+1: P0[5*t+PK] - 1 for t in range(15)}
    SV = {t+1: P0[5*t+PVp] - 1 for t in range(15)}
    if PK == PVp: SV = dict(SK)
    syncs = {}
    for t in range(1, 16):
        syncs.setdefault(max(SK[t], 0), []).append(("k", t)); syncs.setdefault(max(SV[t], 0), []).append(("v", t))
    syncs.setdefault(0, [])
    syncs.setdefault(P0[75+PK] - 1, [])
    sp = sorted(syncs)
    def after(pos): return [q_ for q_ in sp if q_ >= pos][0] + 2
    kdone = {0: 0}; vdone = {0: 0}
    for t in range(1, 16): kdone[t] = P0[5*(t-1)+4] - 1; vdone[t] = P0[5*t] + 7
    END = OPT.get("kvend", 68); Q = []
    nt_ = 0
    for j in range(4, 16):
        for tn in range(4):
            rel = after(kdone[prevuse(j)]) if tn < 2 else after(vdone[prevuse(j)])
            Q.append(((("k" if tn < 2 else "v"), j), coop(tn, j), rel, (nt_*P0[END])//47)); nt_ += 1
    ST = OPT.get("wo_st", 1)
    if not WQS:
        for n in range(5): Q.append((("st", 0), [WST[n]], 0, P0[ST + 2*n] + 3))
    FSP = [q_ for q_ in sp if q_ >= P0[ST + 22]][0] if not WQS else sp[1]
    Q.append((("fs", 0), [f"buffer_store_dword v{V_ONE}, v{V_ZERO}, s[36:39], s77 offen sc1"], FSP + 2, FSP + 2))
    CKP = OPT.get("ckp", 40)
    Q.append((("cl", 0), [f"buffer_load_dwordx4 {vr(V_FL)}, v94, s[36:39], s93 offen sc1"], 0, P0[CKP-9]))
    W0 = OPT.get("w0", 68); NWC = OPT.get("nwc", 5); wo_done = list(range(NWC))
    for c in range(NWC):
        r = ((8*c) % 80) >> 4
        rel = max(after(P0[CKP]), 0 if r == 0 else max(after(kdone[PSTEP[r]]), after(vdone[PSTEP[r]])))
        Q.append((*wo_chunk(c), rel, (P0[CKP + 1 + OPT.get("cstep", 4)*c] if c < 4 else P0[W0] + ((c-4)*(NG - 20 - P0[W0]))//(NWC-4))))
    Q.sort(key=lambda q_: max(q_[2], q_[3]))
    prev = 1
    for tag, ins, rel, tgt in Q:
        pend = []
        for x in ins:
            if not x.startswith("buffer"): pend.append(x); continue
            lo = max(rel, tgt, prev + max(OPT.get("dsp", 8) if tag[0] in "kv" else 4, 1 + len(pend)))
            cands = [k for k in range(lo, min(NG, lo + OPT.get("dwin", 10))) if used(G[k]) == 0] or [k for k in range(lo, min(NG, lo+6)) if used(G[k]) == 1] or [lo]
            gp = cands[0]
            for n_, p in enumerate(pend): G[gp - len(pend) + n_]["s"].append(p)
            pend = []
            G[gp]["m"].append((tag, x)); prev = gp
    def place(reads, lo, hi):
        slots = []
        fr = [k for k in range(lo, hi) if used(G[k]) == 0]
        if len(fr) >= len(reads): slots = [fr[(n_*len(fr))//len(reads)] for n_ in range(len(reads))]
        for lim in (2, 3, 4):
            for k in range(lo, hi):
                if any(isinstance(x, tuple) for x in G[k]["m"]): continue
                if lim > 2 and G[k]["v"] and G[k]["v"][0].startswith("v_exp"): continue
                while len(slots) < len(reads) and used(G[k]) + slots.count(k) < lim: slots.append(k)
        assert len(slots) == len(reads), (lo, hi)
        RL = OPT.get("rdl", 0)
        lg = [k for k in range(lo, hi) if len(G[k]["v"]) >= 3]
        if RL and len(lg) >= 2 and hi < P0[OPT.get("lump1", 79)]:
            for n_, x in enumerate(reads):
                g_ = G[lg[(n_*len(lg))//len(reads)]]
                if RL == 1: g_["s2"].append(x)
                else: g_["v"].insert(min(len(g_["v"]) - 1, 1 + 2*len(g_["pre"])), x); g_["pre"].append(1)
            return
        for k, x in zip(sorted(slots), reads): G[k]["m"].append(x)
    for t in range(1, 16):
        place(k_reads(t & 1, slotK(t)), max(SK[t], 0) + 2, kdone[t] - 5)
        place(v_reads(t & 1, slotV(t)), max(SV[t], 0) + 2, vdone[t] - 4)
        if kdone[t] not in syncs: G[kdone[t]]["s"].append("s_waitcnt lgkmcnt(0)")
        G[vdone[t]]["s"].append("s_waitcnt lgkmcnt(0)")
    EI = OPT.get("ei", 1)
    def ost(i, s): return f"buffer_store_dwordx4 {vr(vO(i,2*s))}, v{V_L16 if i<4 else V_L16B}, s[36:39], s{66+s} offen offset:{(i%4)*1024} sc1"
    def epi(i):
        assert len(V_LM) in (0, 5)
        l = L_REG[i]; t_ = 32 + i; rc = 20 + 2*i if not V_LM else l + 2
        parts = [[f"v_mov_b32 v{t_}, v{l}", "s_nop 1", f"v_permlane16_swap_b32 v{l}, v{t_}", f"v_add_f32 v{l}, v{l}, v{t_}", f"v_mov_b32 v{t_}, v{l}", "s_nop 1",
                  f"v_permlane32_swap_b32 v{l}, v{t_}", f"v_add_f32 v{l}, v{l}, v{t_}", f"v_rcp_f32 v{rc}, v{l}"]]
        if V_LM: parts = [[f"v_rcp_f32 v{rc}, v{l}"]]
        for s_ in range(4):
            b0 = vO(i, 2*s_)
            parts.append([f"v_pk_mul_f32 {vr(b0+r,2)}, {vr(b0+r,2)}, {vr(rc,2)} op_sel_hi:[1,0]" for r in range(0, 8, 2)] +
                         [f"v_cvt_pk_bf16_f32 v{b0+r}, v{b0+2*r}, v{b0+2*r+1}" for r in range(4)] + [(("os", 3), ost(i, s_))])
        return parts
    G[P0[74]]["s2"] += ["s_lshl_b32 s66, s41, 4", "s_add_u32 s66, s66, s42", "s_lshl_b32 s66, s66, 2", "s_add_u32 s66, s66, s40", "s_mul_i32 s66, s66, 20480",
                        "s_add_u32 s67, s66, 5120", "s_add_u32 s68, s66, 10240", "s_add_u32 s69, s66, 15360"]
    if EI:
        for i in range(4):
            parts = epi(i)
            G[P0[75+i] + 12 if not V_LM else P0[76+i] + 1]["s2"] += parts[0]
            n_ = P0[77+i] - P0[76+i]
            for s_ in range(4): G[P0[76+i] + ((s_+1)*n_)//4 - 1]["s2"] += parts[1+s_]
        G[P0[79] + 1 if not V_LM else NG - 1]["s2"] += epi(4)[0]
    log[:] = [(("k", x[1]) if x[0] == "kv" else x) for x in log]
    oldlen = len(log)
    for k in range(NG):
        g_ = G[k]
        if k == P0[CKP]:
            e("s_cmp_eq_u32 s73, 0\ns_cbranch_scc1 WO_OK")
            e(f"s_waitcnt vmcnt({min(63, need_wait([('cl', 0)]))})")
            e("s_mov_b32 s48, 0")
            e("WO_CHK:")
            e(f"v_cmp_ne_u32 vcc, s30, v{V_FL}\nv_cmp_ne_u32 s[94:95], s30, v{V_FL+1}\ns_or_b64 s[94:95], s[94:95], vcc")
            e(f"v_cmp_ne_u32 vcc, s30, v{V_FL+2}\ns_nop 1\ns_or_b64 s[94:95], s[94:95], vcc\nv_cmp_ne_u32 vcc, s30, v{V_FL+3}\ns_nop 1\ns_or_b64 s[94:95], s[94:95], vcc")
            e("s_cbranch_scc0 WO_OK")
            e("s_add_u32 s48, s48, 1\ns_cmp_ge_u32 s48, 0x40000\ns_cbranch_scc1 WO_OK")
            e(f"s_sleep 8\nbuffer_load_dwordx4 {vr(V_FL)}, v94, s[36:39], s93 offen sc1\ns_waitcnt vmcnt(0)\ns_branch WO_CHK")
            e("WO_OK:")
        e(MS[k])
        if k in syncs:
            tags = [(("k", t_) if t_ < 4 else (c_, t_)) for c_, t_ in syncs[k]] + ([("st", 0)] if k == FSP else [])
            for tg in tags:
                if tg[0] in "kv" and tg[1] >= 4: assert log.count(tg) == 4, (k, tg)
            wv = f"vmcnt({min(63, need_wait(tags))}) " if tags else ""
            e(f"s_waitcnt {wv}lgkmcnt(0)")
        if k - 1 in syncs: e("s_barrier")
        if OPT.get("x_sl") == 2 and k - 2 in syncs: e(f"s_getpc_b64 s[70:71]\ns_load_dword s72, s[70:71], {OPT.get('sld', 1400)}")
        if OPT.get("prof") in (2, 5):
            if k in P0[0:80:5]: e("s_memrealtime s[96:97]")
            if k - 8 in P0[0:80:5] : e(f"s_waitcnt lgkmcnt(0)\nv_writelane_b32 v95, s96, {(32 if OPT['prof'] == 2 else 47) + P0.index(k-8)//5}")
        e.all(g_["s"])
        for x in g_["m"]:
            if isinstance(x, tuple): e(x[1]); log.append(x[0])
            else: e(x)
        e.all(g_["v"])
        for x in g_["s2"]:
            if isinstance(x, tuple): e(x[1]); log.append(x[0])
            else: e(x)
    stamp(e)
    if not EI:
        for i in range(5): e.all(epi(i)[0])
    e(f"v_add_f32 v76, v{L_REG[0]}, v{L_REG[1]}\nv_add_f32 v77, v{L_REG[2]}, v{L_REG[3]}\nv_add_f32 v76, v76, v{L_REG[4]}\nv_add_f32 v76, v76, v77")
    e(f"v_cmp_nge_f32 vcc, 0x4e800000, v76")
    e("v_and_b32 v77, 1, v2\nv_lshlrev_b32 v77, 12, v77\nv_and_b32 v78, 2, v2\nv_mul_u32_u24 v78, 0xC000, v78\nv_add_u32 v77, v78, v77")
    e("s_cmp_lg_u64 vcc, 0\ns_cselect_b32 s56, s31, 0\ns_lshl_b32 s57, s40, 2\ns_add_u32 s57, s57, 0x4000")
    e("v_add_u32 v77, s57, v77\nv_mov_b32 v78, s56\nds_write_b32 v77, v78")
    e("s_add_u32 s57, s62, 0x4000\nv_mov_b32 v79, s57")
    e(f"s_lshl_b32 s49, s47, 12\ns_sub_u32 s56, s92, s49\nv_add_u32 v84, s56, v{V_L16}\nv_add_u32 v85, s60, v{V_L16}\nv_xor_b32 v86, 0x8000, v85")
    A_WF = [100, 140]
    RA = {0: 84, 1: 85, 2: 86, 3: 86, 4: 85}
    def w_reads(ks, order=range(10)):
        out = []
        for n in order:
            p = (10*ks + n) % 80; r = p >> 4
            out.append(f"ds_read_b128 {ar(A_WF[ks & 1] + 4*n)}, v{RA[r]} offset:{(p & 15)*1024 + (0 if r == 0 else (PREG[r] & 1)*SLOT)}")
        return out
    def chunk_needed(ks): return (10*ks + 9) // 8
    def norm(i):
        for part in epi(i)[1:]:
            for x in part:
                if isinstance(x, tuple): e(x[1]); log.append(x[0])
                else: e(x)
    if not EI:
        for i in range(4): norm(i)
    e(f"s_waitcnt vmcnt({min(63, need_wait([('wl', chunk_needed(1))]))}) lgkmcnt(0)\ns_barrier")
    e("ds_read_b128 v[80:83], v79")
    e.all(w_reads(0))
    norm(4)
    e("s_waitcnt lgkmcnt(10)\nv_or3_b32 v80, v80, v81, v82\nv_or_b32 v80, v80, v83\ns_nop 0\nv_readfirstlane_b32 s56, v80")
    if not OPT.get("x_nofb"): e("s_cmp_lg_u32 s56, 0\ns_cbranch_scc1 FALLBACK")
    e("v_mov_b32 v88, v84\nv_mov_b32 v89, v85\nv_mov_b32 v94, v86")
    RA = {0: 88, 1: 89, 2: 94, 3: 94, 4: 89}
    e("s_cmp_eq_u32 s40, 0\ns_cselect_b32 s78, s78, 0x7000000")
    stamp(e)
    KEEP = [8, 12] + list(range(16, 88, 4)) + [vO(i, 1) for i in range(5)]
    assert len(KEEP) == 25
    def acc(i, n): return vr(KEEP[n*5+i]) if n < 5 else ar(((n-5)*5+i)*4)
    def own(s): return [vr(vO(i, 2*s)) for i in range(5)]
    OS = [[vr(vO(i, 2*s+1)) for i in range(5)] for s in (1, 2, 3)] + [[ar(180 + 20*k + 4*i) for i in range(5)] for k in range(3)] + [own(s) for s in range(4)]
    def oslot(ks): return own(ks) if ks < 4 else OS[(ks-4) % 10]
    def o_loads(ks):
        j, s_ = divmod(ks, 4)
        pre = []
        if s_ == 0: pre = [f"s_cmp_lt_u32 s89, {j}", f"s_cselect_b32 s53, {j}, {j-1}", "s_mul_i32 s53, s53, 81920", "s_add_u32 s53, s53, s52"]
        return pre + [f"buffer_load_dwordx4 {oslot(ks)[i]}, v{V_L16 if i<4 else V_L16B}, s[36:39], s53 offen offset:{(i%4)*1024} sc1" for i in range(5)] + ["s_add_u32 s53, s53, 5120"]
    e("s_lshl_b32 s52, s41, 2\ns_add_u32 s52, s52, s88\ns_lshl_b32 s52, s52, 4\ns_add_u32 s52, s52, s40\ns_mul_i32 s52, s52, 20480")
    nextc = max(wo_done) + 1; nexto = 4
    KF = OPT.get("kf", 2); PG = OPT.get("pg", 30)
    pl = "v[4:7]"; carry = 0
    def M(ks, i, n): return mfma(acc(i, n), ar(A_WF[ks & 1] + 4*n), oslot(ks)[i], "0" if ks == 0 else acc(i, n))
    for ks in range(15):
        lastb = (ks == 14)
        if ks == KF + 1:
            e(f"s_mov_b32 s56, 0\ns_waitcnt vmcnt({need_wait([('pl', 0)])})")
            e("POLL:")
            e("v_xor_b32 v4, s30, v4\nv_xor_b32 v5, s30, v5\nv_xor_b32 v6, s30, v6\nv_xor_b32 v7, s30, v7")
            e("v_or3_b32 v4, v4, v5, v6\nv_or_b32 v4, v4, v7\ns_add_u32 s56, s56, 1\nv_readfirstlane_b32 s57, v4")
            e("s_cmp_eq_u32 s57, 0\ns_cbranch_scc1 POLL_OK\ns_cmp_ge_u32 s56, 0x40000\ns_cbranch_scc1 POLL_OK")
            e(f"buffer_load_dwordx4 {pl}, v{V_ZERO}, s[36:39], s91 offen sc1\ns_waitcnt vmcnt(0)\ns_branch POLL")
            e("POLL_OK:")
            stamp(e)
            if ks == 4:
                e.all(o_loads(4)); log.extend([("o", 4)]*5); nexto = 5
        if not lastb: MS = [M(ks, i, n) for n in range(10) for i in range(5)]
        else:
            MS = [M(14, i, n) for n in range(5, 10) for i in range(5)][:10]
            rest14 = [(i, n) for n in range(5, 10) for i in range(5)]
            MS += [M(15, i, n) for i, n in rest14[:10]]
            for i, n in rest14[10:]: MS += [M(14, i, n), M(15, i, n)]
            for n in range(5):
                for i in range(5): MS += [M(14, i, n), M(15, i, n)]
        G = [dict(s=[], m=[], v=[]) for _ in range(len(MS))]
        if ks > 0:
            tags = [("wl", chunk_needed(ks+1))] + ([("o", ks)] if ks >= 4 else []) + ([("os", 3)] if ks == KF else [])
            e(f"s_waitcnt vmcnt({min(63, need_wait(tags))}) lgkmcnt(0)")
            G[0]["s"].append("s_barrier")
        else: e("s_waitcnt lgkmcnt(0)")
        if OPT.get("prof") == 4:
            G[40]["s"].append("s_memrealtime s[96:97]")
            if ks > 0: e(f"v_writelane_b32 v95, s96, {32+ks-1}")
        d = []; lo = 4; hi = 48
        if ks == KF:
            G[1]["m"].append((("fl", 0), f"buffer_store_dword v{V_ONE}, v{V_ZERO}, s[36:39], s78 offen sc1"))
            G[PG]["m"].append((("pl", 0), f"buffer_load_dwordx4 {pl}, v{V_ZERO}, s[36:39], s91 offen sc1"))
            hi = PG - 1
        budget = OPT.get("ldpre", 4) if ks <= KF else OPT.get("ld1", 10) if ks == KF + 1 else OPT.get("ldk", 10) + carry
        while budget > 2:
            can_o = ks > KF and nexto < 16 and (nexto - 10 < ks if nexto >= 10 else True)
            can_c = nextc < 20 and (nextc < 10 or 8*(nextc-10) + 8 <= 10*(ks+1))
            c_urgent = can_c and (8*nextc)//10 - 1 - ks <= OPT.get("curg", 2)
            if can_c and (c_urgent or not can_o or nexto - ks >= OPT.get("olead", 3)):
                tag, ins = wo_chunk(nextc); d += [(tag, x) for x in ins]; nextc += 1; budget -= 4
            elif can_o: d += [(("o", nexto), x) for x in o_loads(nexto)]; nexto += 1; budget -= 5
            else: break
        carry = budget if ks > KF + 1 else 0
        if ks == KF + 1: lo = 3; hi = 3 + 3*sum(x.startswith("buffer") for _, x in d)
        reads = w_reads(ks+1, [5,6,7,8,9,0,1,2,3,4] if ks >= 13 else range(10))
        nd = sum(x.startswith("buffer") for _, x in d)
        dg = [lo + (k*(hi-lo))//max(nd, 1) for k in range(nd)]
        prev = 0; pend = []; k = 0
        for tag, x in d:
            if x.startswith("buffer"):
                gp = dg[k]; k += 1
                av = [q_ for q_ in range(prev+1, gp) if not G[q_]["m"]] or [gp-1]
                for n_, p in enumerate(pend): G[av[min(len(av)-1, (n_*len(av))//len(pend))]]["s"].append(p)
                pend = []; G[gp]["m"].append((tag, x)); prev = gp
            else: pend.append(x)
        for n_, p in enumerate(pend): G[min(49, prev+1+n_)]["s"].append(p)
        gi = 1
        while reads:
            if not G[gi]["m"]: G[gi]["v"].append(reads.pop(0))
            gi += 1 if lastb else 2 if not G[gi]["m"] else 1
        if lastb:
            G[9]["s"].append(f"s_waitcnt vmcnt(0) lgkmcnt(4)")
            G[19]["s"].append(f"s_waitcnt lgkmcnt(0)")
            e("s_mul_i32 s57, s40, 25600\ns_add_u32 s57, s57, 0x8000\ns_cmp_eq_u32 s40, 3\ns_cselect_b32 s57, 0x20000, s57")
            e("s_xor_b32 s58, s40, 2\ns_mul_i32 s58, s58, 25600\ns_add_u32 s58, s58, 0x8000\ns_cmp_eq_u32 s40, 1\ns_cselect_b32 s58, 0x20000, s58")
            e(f"s_lshl_b32 s50, s41, 2\ns_add_u32 s50, s50, s89\ns_lshl_b32 s51, s50, 2\ns_add_u32 s48, s51, s40\ns_lshl_b32 s48, s48, 2\ns_add_u32 s48, s48, s88\ns_mul_i32 s48, s48, {PSZ}\ns_add_u32 s48, s48, {WS_P}")
            e(f"s_cmp_eq_u32 s40, s88\ns_cselect_b32 s48, 0x7000000, s48\ns_mov_b32 s59, 0x30000\ns_cselect_b32 s59, 0, s59")
            G[12]["v"] += [f"v_add_u32 v88, s57, v{V_L16}", f"v_add_u32 v89, s58, v{V_L16}"]
            G[13]["v"] += [f"v_add_u32 v3, s59, v{V_L16}"]
            done = {t: (10 + t if t < 10 else 21 + 2*(t-10)) for t in range(25)}
            pos = 15
            for t in range(25):
                pos = max(pos + 1 + (t % 2), done[t] + 5)
                G[pos]["v"].append(f"ds_write_b128 v88, {ar(4*t)} offset:{t*1024}")
            bar = pos + 3
            G[bar]["s"].append("s_waitcnt lgkmcnt(0)"); G[bar+1]["s"].append("s_barrier")
            busy = set(range(vO(0,3), 256))
            TMP = [vO(i, 2*s_) for s_ in range(4) for i in range(5)] + [vO(i, 7) for i in range(5)]
            items = [f"ds_read_b128 {vr(TMP[t])}, v89 offset:{t*1024}" for t in range(8)]
            nrd = 8
            post = []
            for j in range(13):
                ts = [2*j, 2*j+1] if j < 12 else [24]
                blk = [("W", ts[-1])]
                for t in ts: blk += [f"v_add_f32 v{KEEP[t]+r}, v{KEEP[t]+r}, v{TMP[t]+r}" for r in range(4)]
                for k, t in enumerate(ts): blk += [f"v_cvt_pk_bf16_f32 v{TMP[2*j]+2*k}, v{KEEP[t]}, v{KEEP[t]+1}", f"v_cvt_pk_bf16_f32 v{TMP[2*j]+2*k+1}, v{KEEP[t]+2}, v{KEEP[t]+3}"]
                blk += [f"buffer_store_dwordx4 {vr(TMP[2*j])}, v{V_L16}, s[36:39], s48 offen offset:{(j%4)*1024} sc1", f"ds_write_b128 v3, {vr(TMP[2*j])} offset:{j*1024}"]
                if j % 4 == 3: blk.append("s_add_u32 s48, s48, 4096")
                for _ in range(2):
                    if nrd < 25: blk.append(f"ds_read_b128 {vr(TMP[nrd])}, v89 offset:{nrd*1024}"); nrd += 1
                items += blk
            gi2 = bar + 2; lds_log = []
            while items:
                x = items[0]
                tgt = G[gi2]["v"] if gi2 < 100 else post
                if isinstance(x, tuple):
                    if gi2 < 100 and gi2 < 51 + 2*x[1] + 4: gi2 += 1; continue
                    idx = lds_log.index(x[1]); tgt.append(f"s_waitcnt lgkmcnt({min(15, len(lds_log)-1-idx)})"); items.pop(0); continue
                if gi2 < 100 and len(tgt) >= 3: gi2 += 1; continue
                tgt.append(items.pop(0))
                if x.startswith("ds_read"): lds_log.append(int(x.split(":")[-1])//1024)
                elif x.startswith("ds_write"): lds_log.append(-1)
        for m, g_ in zip(MS, G):
            e(m); e.all(g_["s"])
            for tag, x in g_["m"]: e(x); log.append(tag)
            e.all(g_["v"])
    assert nextc == 20 and nexto == 16, (nextc, nexto)
    stamp(e)
    e.all(post)
    e(f"s_lshl_b32 s55, s50, 7\ns_add_u32 s55, s55, {WS_FLAG2}\ns_lshl_b32 s56, s88, 2\ns_add_u32 s54, s55, s56")
    srd(e, 8, 14, OUT_BYTES)
    e(f"s_add_u32 s48, s51, s88\ns_mul_i32 s48, s48, {4*PSZ}\ns_add_u32 s48, s48, {WS_P}\ns_lshl_b32 s56, s40, 10\ns_add_u32 s48, s48, s56")
    e(f"v_add_u32 v3, s56, v{V_L16}")
    e("v_and_b32 v8, 15, v2\nv_mul_u32_u24 v8, 1280, v8\nv_lshrrev_b32 v9, 4, v2\nv_lshl_add_u32 v8, v9, 3, v8")
    e(f"s_lshl_b32 s52, s41, 1\ns_and_b32 s56, s88, 1\ns_add_u32 s52, s52, s56\ns_mul_i32 s52, s52, {80*1280}")
    e("s_lshl_b32 s53, s89, 1\ns_lshr_b32 s56, s88, 1\ns_add_u32 s53, s53, s56\ns_mul_i32 s53, s53, 160\ns_add_u32 s52, s52, s53")
    for p in range(3):
        e(f"s_cmp_le_u32 s88, {p}\ns_cselect_b32 s{60+p}, {p+1}, {p}\ns_mul_i32 s{60+p}, s{60+p}, {PSZ}\ns_add_u32 s{60+p}, s{60+p}, s48")
    for k in range(4):
        for h in range(2 if k < 3 else 1):
            e(f"s_lshl_b32 s57, s40, 1\ns_add_u32 s57, s57, {8*k + h}\ns_mul_i32 s58, s57, 52\ns_lshr_b32 s58, s58, 8")
            e(f"s_mul_i32 s56, s58, 5\ns_sub_u32 s56, s57, s56\ns_mul_i32 s56, s56, {16*1280}\ns_lshl_b32 s58, s58, 5\ns_add_u32 s58, s58, s56\ns_add_u32 s{64+2*k+h}, s58, s52")
    e(f"s_cmp_eq_u32 s40, 0\ns_cselect_b32 s58, 0, 0x7000000\nv_add_u32 v10, 0x2000, v{V_L16}\nv_add_u32 v11, 0x3000, v{V_L16}\nv_add_u32 v11, s58, v11\ns_mov_b32 s59, 0xffff0000")
    e("s_add_u32 s54, s54, s58")
    e("s_waitcnt vmcnt(0) lgkmcnt(0)\ns_barrier")
    e(f"buffer_store_dword v{V_ONE}, v{V_ZERO}, s[36:39], s54 offen sc1")
    for k in range(4): e(f"ds_read_b128 {vr(96 + 16*k + 12)}, v3 offset:{k*4096}")
    stamp(e)
    e("s_mov_b32 s56, 0\nPOLL2:")
    e(f"buffer_load_dwordx4 v[12:15], v{V_ZERO}, s[36:39], s55 offen sc1\ns_add_u32 s56, s56, 1\ns_waitcnt vmcnt(0)")
    e("v_xor_b32 v12, s30, v12\nv_xor_b32 v13, s30, v13\nv_xor_b32 v14, s30, v14\nv_xor_b32 v15, s30, v15")
    e("v_or3_b32 v12, v12, v13, v14\nv_or_b32 v12, v12, v15\ns_nop 0\nv_readfirstlane_b32 s57, v12")
    e("s_cmp_eq_u32 s57, 0\ns_cbranch_scc1 POLL2_OK\ns_cmp_lt_u32 s56, 0x40000\ns_cbranch_scc1 POLL2")
    e("POLL2_OK:")
    stamp(e)
    VO = [V_L16, V_L16B, 10, 11]
    for k in range(4):
        for p in range(3): e(f"buffer_load_dwordx4 {vr(96 + 16*k + 4*p)}, v{VO[k]}, s[36:39], s{60+p} offen sc1")
    e("s_waitcnt lgkmcnt(0)")
    for k in range(4):
        base = 96 + 16*k
        for r in range(4 if k < 3 else 2): e(f"v_lshlrev_b32 v{16+8*k+2*r}, 16, v{base+12+r}\nv_and_b32 v{17+8*k+2*r}, s59, v{base+12+r}")
    for k in range(4):
        base = 96 + 16*k
        if k == 3: e("s_cmp_lg_u32 s40, 0\ns_cbranch_scc1 K2_FIN")
        e(f"s_waitcnt vmcnt({3*(3-k) + 2*k})")
        for p in range(3):
            for r in range(4 if k < 3 else 2):
                e(f"v_lshlrev_b32 v{48+2*r}, 16, v{base+4*p+r}\nv_and_b32 v{49+2*r}, s59, v{base+4*p+r}")
            for r in range(4 if k < 3 else 2):
                e(f"v_pk_add_f32 {vr(16+8*k+2*r,2)}, {vr(16+8*k+2*r,2)}, {vr(48+2*r,2)}")
        for r in range(4 if k < 3 else 2): e(f"v_cvt_pk_bf16_f32 v{base+r}, v{16+8*k+2*r}, v{17+8*k+2*r}")
        for h in range(2 if k < 3 else 1):
            e(f"buffer_store_dwordx2 {vr(base+2*h,2)}, v8, s[8:11], s{64+2*k+h} offen{['', ' nt', ' sc1', ' sc0 sc1'][OPT.get('of', 0)]}")
    e("s_cmp_lg_u32 s2, 0\ns_cbranch_scc1 K2_FIN")
    e(f"s_mov_b32 s55, {WS_EPOCH}\nbuffer_store_dword v{V_ONE}, v{V_ZERO}, s[36:39], s55 offen sc1")
    e("K2_FIN:")
    if OPT.get("prof"): e("s_waitcnt vmcnt(0)")
    stamp(e)
    stamp_out(e)
    e("s_endpgm")
    e("FALLBACK:")
    e("s_waitcnt vmcnt(0) lgkmcnt(0)\ns_barrier")
    e("s_mov_b32 s31, 0\ns_mov_b32 s61, 0x7000000\ns_mov_b32 s66, 0")
    for r in range(20): e(f"v_mov_b32 v{V_NEGM+r}, 0xff800000")
    e("FB_LOOP:")
    for tn in range(2):
        e(f"s_add_u32 s75, s74, s66\ns_add_u32 s75, s75, {tn*KV_HEAD}\ns_add_u32 m0, s74, {RING[tn]}\ns_nop 0")
        for k in range(2): e(f"buffer_load_dwordx4 v{V_CK+k}, s[80:83], s75 offen offset:{k*1024} lds")
    e("s_waitcnt vmcnt(0)\ns_barrier")
    e.all(k_reads(0, 0))
    e("s_waitcnt lgkmcnt(0)\ns_barrier")
    for i in range(5):
        S = V_S[0]
        for U in range(2):
            for s_ in range(4):
                e(mfma(vr(S+4*U), ar(A_K[0]+(U*4+s_)*4), ar(A_Q+(i*4+s_)*4), "0" if s_ == 0 else vr(S+4*U)))
        e("s_nop 7")
        for r in range(4): e(f"v_max3_f32 v{V_NEGM+4*i+r}, v{S+r}, v{S+4+r}, v{V_NEGM+4*i+r}")
        e("s_nop 3")
    e(f"s_add_u32 s66, s66, 8192\ns_cmp_lt_u32 s66, {KV_HEAD}\ns_cbranch_scc1 FB_LOOP")
    for j in range(4):
        for tn in range(4): plain(e, coop(tn, j))
    e("s_waitcnt vmcnt(0)\ns_barrier")
    e.all(k_reads(0, slotK(0)) + v_reads(0, slotV(0)))
    e("s_waitcnt lgkmcnt(0)\ns_branch ATT_MAX")
    e("K_END:\ns_endpgm")

def main(out):
    K1 = "standalone__mha_block_cached__near_ridge_kernel"
    hdr = open("standalone__mha_block_cached__near_ridge.s.ref").read().split("; Override")[0]
    s = hdr + "; @launch grid=(256,1,1) block=(256,1,1) lds=163840\n"
    s += '.amdgcn_target "amdgcn-amd-amdhsa--gfx950"\n.text\n'
    e = Em(); gen(e)
    import hazard
    e.L, nf = hazard.fix(e.L, verbose=OPT.get("hv", 0))
    if nf: print("hazard fixes:", nf)
    s += f".globl {K1}\n.p2align 8\n.type {K1},@function\n{K1}:\n" + e.text()
    s += f""".section .rodata,"a"
.p2align 6
.amdhsa_kernel {K1}
  .amdhsa_next_free_vgpr 512
  .amdhsa_next_free_sgpr 102
  .amdhsa_accum_offset 256
  .amdhsa_group_segment_fixed_size 0
  .amdhsa_kernarg_size 64
  .amdhsa_user_sgpr_count 2
  .amdhsa_user_sgpr_kernarg_segment_ptr 1
  .amdhsa_system_sgpr_workgroup_id_x 1
  .amdhsa_float_denorm_mode_32 3
.end_amdhsa_kernel
"""
    open(out, "w").write(s)

if __name__ == "__main__":
    for a in sys.argv[2:]:
        k, v = a.split("="); OPT[k] = int(v)
    main(sys.argv[1])
```
